```python
import torch

def _softmax(x, axis=-1):
    return torch.softmax(x, dim=axis)
def _gelu(x):
    return torch.nn.functional.gelu(x, approximate="tanh")
def _silu(x):
    return torch.nn.functional.silu(x)
def _sigmoid(x):
    return torch.sigmoid(x)
def _layernorm(x, axis=-1, eps=1e-5):
    m = x.mean(dim=axis, keepdim=True)
    v = x.var(dim=axis, keepdim=True, unbiased=False)
    return (x - m) / torch.sqrt(v + eps)
def _scatter_add(tgt, idx, src, axis=0):
    return tgt.clone().index_add_(axis, idx, src)
def _segment_sum(src, seg, n):
    out = torch.zeros((n,) + src.shape[1:], dtype=src.dtype)
    return out.index_add_(0, seg, src)
def _pad(x, pw):
    flat = tuple(v for pair in reversed(pw) for v in pair)
    return torch.nn.functional.pad(x, flat)

kernel_name = 'standalone__gqa_softmax__near_ridge'

def setup_inputs():

    _w = (lambda a: (lambda t: t.to(torch.bfloat16) if t.is_floating_point() else t)(torch.as_tensor(a)))
    B, Hq, Hkv, Sq, Sk, D = 8, 32, 16, 384, 384, 128
    return {
        "q": _w((lambda *s: torch.randn(*s, dtype=torch.bfloat16) * 0.8)(B, Hq, Sq, D)),
        "k": _w((lambda *s: torch.randn(*s, dtype=torch.bfloat16) * 0.8)(B, Hkv, Sk, D)),
        "v": _w((lambda *s: torch.randn(*s, dtype=torch.bfloat16) * 0.05)(B, Hkv, Sk, D)),
    }

def reference(q, k, v):
    B, Hq, Sq, D = q.shape
    Hkv = k.shape[1]
    rep = Hq // Hkv
    k = (lambda x, n, axis: torch.repeat_interleave(x, n, dim=axis))(k, rep, axis=1)
    v = (lambda x, n, axis: torch.repeat_interleave(x, n, dim=axis))(v, rep, axis=1)
    scale = D ** -0.5
    scores = torch.einsum("bhqd,bhkd->bhqk", q, k) * scale
    p = _softmax(scores, axis=-1)
    return torch.einsum("bhqk,bhkd->bhqd", p, v)
```

```python
import sys, math, argparse

KNAME = "standalone__gqa_softmax__near_ridge_kernel"
HEADER = """; Kernarg layout for this problem (48 bytes, ptrs only, base s[0:1]):
; @launch grid=(256,1,1) block=(256,1,1) lds=163840
"""

C_SCALE = (128 ** -0.5) * math.log2(math.e)
def f2u(x):
    import struct
    return struct.unpack("<I", struct.pack("<f", x))[0]

vQ, vDK0, vDK1, vDV = 1, 2, 3, 4
vKa = [5, 6]; vKb = [7, 8]; vVa, vVb = 9, 10
vL = {"A": 11, "B": 12, "C": 13}
vM = {"A": 14, "B": 15, "C": 14}
vR = {"A": 16, "B": 17, "C": 16}
vT0, vT1 = 18, 19
vX = 20
vE = [24, 28]
O = {"A": 32, "B": 96, "C": 32}
S = [160, 176]
P = [192, 200]
QC = 208
NEGM = 240
aQ = {"A": 0, "B": 32}
aK, aV, aVres = 64, 96, 128
sQ, sK, sV, sO = 8, 12, 16, 20
sW2048, sC, sMask, sT = 24, 25, 26, 27
sQoff = {"A": 28, "B": 29, "C": 30}
sOff = 32
sFlag = {"A": 44, "B": 46, "C": 48}
sTmp = 50

def vr(b, n): return f"v[{b}:{b+n-1}]"
def ar(b, n): return f"a[{b}:{b+n-1}]"
def sr(b, n): return f"s[{b}:{b+n-1}]"

KSLOT = {j: j for j in range(12)}
VSLOT = {j: 8 + j for j in range(4, 12)}
VSLOT.update({0: 10, 1: 18, 2: 11, 3: 19})
def k_addr(j, ks):
    off = KSLOT[j] * 8192 + 256 * (ks >> 1)
    if off < 65536: return vKa[ks & 1], off
    return vKb[ks & 1], off - 65536
def v_addr(j, t, u, b):
    off = VSLOT[j] * 8192 + t * 4096 + u * 2048 + b * 256
    if VSLOT[j] < 12: return vVa, off - 81920
    return vVb, off - 98304
def v_regs(j): return aVres + 32 * j if j < 4 else aV

class Op:
    __slots__ = ("text", "kind", "cost", "rel", "due", "needs", "tag", "gap", "deps", "trans", "prio", "done")
    def __init__(self, text, kind, cost=1, rel=0, due=10**9, needs=(), tag=None, deps=(), trans=False):
        self.text, self.kind, self.cost, self.rel, self.due = text, kind, cost, rel, due
        self.needs, self.tag, self.gap = list(needs), tag, None
        self.deps, self.trans, self.prio, self.done = list(deps), trans, 0.0, False

def chain(ops, after=()):
    prev = list(after)
    for o in ops:
        o.deps += prev; prev = [o]
    return ops

def gen(opt):
    NT_Q = " nt" if opt.ntq else ""
    NT_KV = " nt" if opt.ntkv else ""
    NT_O = " nt" if opt.nto else ""
    LA = opt.la
    out = []
    e = out.append

    mf = []
    idx = {}
    def qk(t, j, sb):
        idx[("QK", t, j)] = len(mf)
        for ks in range(8):
            bq = ar(aQ[t] + 4 * ks, 4) if t != "C" else vr(QC + 4 * ks, 4)
            c = vr(sb, 16) if ks else (vr(NEGM, 16) if (t == "C" and j > 0) else "0")
            needs = [("K", j, ks)]
            if j == 0 and t != "C": needs.append(("Q", t, ks))
            mf.append(Op(f"v_mfma_f32_32x32x16_bf16 {vr(sb,16)}, {ar(aK+4*ks,4)}, {bq}, {c}", "M", needs=needs))
    def pv(t, j, pb, blockmajor=False):
        idx[("PV", t, j)] = len(mf)
        order = [(tt, b) for tt in range(2) for b in range(4)]
        if blockmajor: order = [(tt, b) for b in range(4) for tt in range(2)]
        for (tt, b) in order:
            f = 4 * tt + b
            d = vr(O[t] + 16 * b, 16)
            c = "0" if (j == 0 and tt == 0) else d
            idx[("PVm", t, j, tt, b)] = len(mf)
            mf.append(Op(f"v_mfma_f32_32x32x16_bf16 {d}, {ar(v_regs(j)+4*f,4)}, {vr(pb+4*tt,4)}, {c}", "M",
                         needs=[("V", j, f)] if not (t == "C" and j < 4) else []))
    for j in range(12):
        qk("A", j, S[0])
        if j > 0: pv("B", j - 1, P[1])
        qk("B", j, S[1])
        pv("A", j, P[0])
    qk("C", 0, S[0]); pv("B", 11, P[1])
    for j in range(12):
        if j < 11: qk("C", j + 1, S[(j + 1) & 1])
        pv("C", j, P[j & 1], blockmajor=(j == 11))
    NM = len(mf)
    assert NM == 576

    fixed = [[] for _ in range(NM)]
    first = [[] for _ in range(NM)]
    cap = [6] * NM
    streams = []

    def pin(g, op): fixed[g].append(op)

    def dma_pair(kind, j):
        slot = KSLOT[j] if kind == "K" else VSLOT[j]
        srd = sK if kind == "K" else sV
        va = (vDK0, vDK1) if kind == "K" else (vDV, vDV)
        m0 = Op(f"s_add_u32 m0, s{sW2048}, {slot*8192}", "S")
        d = [Op(f"buffer_load_dwordx4 v{va[i]}, {sr(srd,4)}, s{sOff+j} offen offset:{1024*i}{NT_KV} lds", "G", 2,
                tag=("D" + kind, j, i)) for i in range(2)]
        return m0, d
    def q_load(t, ks):
        dst = ar(aQ[t] + 4 * ks, 4) if t != "C" else vr(QC + 4 * ks, 4)
        return Op(f"buffer_load_dwordx4 {dst}, v{vQ}, {sr(sQ,4)}, s{sQoff[t]} offen offset:{32*ks}{NT_Q}", "G", 2, tag=("Q", t, ks))
    def k_read(j, ks):
        a, off = k_addr(j, ks)
        return Op(f"ds_read_b128 {ar(aK+4*ks,4)}, v{a} offset:{off}", "L", 1, tag=("K", j, ks))
    def v_read(j, f, u):
        tt, b = f >> 2, f & 3
        a, off = v_addr(j, tt, u, b)
        return Op(f"ds_read_b64_tr_b16 {ar(v_regs(j)+4*f+2*u,2)}, v{a} offset:{off}", "L", 1,
                  tag=("V", j, f) if u else ("Vh", j, f))

    lastl = {}
    def softmax(t, j, sb, pb, rel, due0, due1, mode, after=()):
        ops = []
        pre, ex = {}, {}
        def mkpre(r):
            if mode == "fma": o = Op(f"v_fma_f32 v{sb+r}, v{sb+r}, s{sC}, v{vM[t]}", "V", deps=after)
            elif mode == "add": o = Op(f"v_add_f32 v{sb+r}, v{vM[t]}, v{sb+r}", "V", deps=after)
            else: return []
            pre[r] = o
            return [o]
        ops += mkpre(0) + mkpre(1)
        for i in range(8):
            r = 2 * i
            for x in (r, r + 1):
                ex[x] = Op(f"v_exp_f32 v{sb+x}, v{sb+x}", "V", 2, deps=[pre[x]] if x in pre else after, trans=True)
                ops.append(ex[x])
            if i < 7: ops += mkpre(r + 2) + mkpre(r + 3)
            for x in (r, r + 1):
                txt = f"v_mov_b32 v{vL[t]}, v{sb}" if (j == 0 and x == 0) else f"v_add_f32 v{vL[t]}, v{vL[t]}, v{sb+x}"
                a = Op(txt, "V", deps=[ex[x]] + ([lastl[t]] if t in lastl else []), due=due1)
                lastl[t] = a; ops.append(a)
            ops.append(Op(f"v_cvt_pk_bf16_f32 v{pb+i}, v{sb+r}, v{sb+r+1}", "V", deps=[ex[r], ex[r + 1]],
                          due=due0 if i < 4 else due1))
        for o in ops: o.rel = rel
        return ops
    def rowmax(t, sb, rel):
        m = vM[t]
        ops = [Op(f"v_max3_f32 v{m}, v{sb}, v{sb+1}, v{sb+2}", "V")]
        for r in range(3, 15, 2):
            ops.append(Op(f"v_max3_f32 v{m}, v{m}, v{sb+r}, v{sb+r+1}", "V"))
        ops.append(Op(f"v_max_f32 v{m}, v{m}, v{sb+15}", "V"))
        ops.append(Op(f"v_mov_b32 v{vT0}, v{m}", "V"))
        ops.append(Op("s_nop 1", "V", 2))
        ops.append(Op(f"v_permlane32_swap_b32 v{m}, v{vT0}", "V"))
        ops.append(Op(f"v_max_f32 v{m}, v{m}, v{vT0}", "V"))
        if t == "C": ops.append(Op(f"v_sub_f32 v{m}, 0, v{m}", "V"))
        else: ops.append(Op(f"v_mul_f32 v{m}, s{sC}, v{m}", "V")); ops.append(Op(f"v_sub_f32 v{m}, 0, v{m}", "V"))
        for o in ops: o.rel = rel
        return chain(ops)
    ecnt = [0]
    def epilogue(t, rel_l, rel_blk, due_blk):
        l, r = vL[t], vR[t]
        ops = [Op(f"v_mov_b32 v{vT1}, v{l}", "V"), Op("s_nop 1", "V", 2),
               Op(f"v_permlane32_swap_b32 v{l}, v{vT1}", "V"),
               Op(f"v_add_f32 v{l}, v{l}, v{vT1}", "V"),
               Op(f"v_rcp_f32 v{r}, v{l}", "V", 2, trans=True),
               Op(f"v_cmp_nle_f32_e64 {sr(sFlag[t],2)}, v{l}, s{sT}", "V")]
        for o in ops: o.rel = rel_l
        ops[0].deps.append(lastl[t])
        for b in range(4):
            for s in range(2):
                tmp = vE[ecnt[0] & 1]; ecnt[0] += 1
                base = O[t] + 16 * b + 8 * s
                blk = []
                for i in range(4):
                    blk.append(Op(f"v_mul_f32 v{base+2*i}, v{r}, v{base+2*i}", "V"))
                    blk.append(Op(f"v_mul_f32 v{base+2*i+1}, v{r}, v{base+2*i+1}", "V"))
                    blk.append(Op(f"v_cvt_pk_bf16_f32 v{tmp+i}, v{base+2*i}, v{base+2*i+1}", "V"))
                for o in blk: o.rel = rel_blk[b]; o.due = due_blk[b]
                st = Op(f"buffer_store_dwordx4 {vr(tmp,4)}, v{vQ}, {sr(sO,4)}, s{sQoff[t]} offen offset:{64*b+32*s}{NT_O}", "ST", 2,
                        tag=("ST", t, b, s))
                st.rel = rel_blk[b]; st.due = due_blk[b]
                ops += blk + [st]
        return ops
    def prescale(rel, due):
        ops = []
        for i in range(32):
            r = QC + i
            blk = [Op(f"v_lshlrev_b32 v{vX}, 16, v{r}", "V", needs=[("Q", "C", i >> 2)]),
                   Op(f"v_and_b32 v{r}, s{sMask}, v{r}", "V"),
                   Op(f"v_mul_f32 v{vX}, s{sC}, v{vX}", "V"),
                   Op(f"v_mul_f32 v{r}, s{sC}, v{r}", "V"),
                   Op(f"v_cvt_pk_bf16_f32 v{r}, v{vX}, v{r}", "V")]
            for o in blk: o.rel = rel[i >> 2]; o.due = due
            ops += blk
        return ops

    pro = []
    pro += [q_load("A", ks) for ks in range(8)]
    m0, d = dma_pair("K", 0); pro += [m0, Op("s_nop 0", "S")] + d
    pro += [q_load("B", ks) for ks in range(8)]
    for g in range(LA):
        for kind, j in (("V", g), ("K", g + 1)):
            m0, d = dma_pair(kind, j); pro += [m0, Op("s_nop 0", "S")] + d

    qc_issued = {}
    for j in range(12):
        a0 = idx[("QK", "A", j)]; b0 = idx[("QK", "B", j)]; pa = idx[("PV", "A", j)]
        bar = a0 + 7
        need = [("DV", j, 1)] + ([("DK", j + 1, 1)] if j < 11 else [])
        first[bar].append(Op("", "W", needs=need))
        pin(bar, Op("s_barrier", "B", 0)); cap[bar] = 2
        if j + LA <= 11:
            m0, d = dma_pair("V", j + LA); first[a0].append(m0); pin(a0 + 1, d[0]); pin(a0 + 2, d[1])
        if j + LA + 1 <= 11:
            m0, d = dma_pair("K", j + LA + 1); first[a0 + 3].append(m0); pin(a0 + 4, d[0]); pin(a0 + 5, d[1])
        if opt.qcp <= j < opt.qcp + 8 // opt.qcn:
            for i in range(opt.qcn):
                ks = (j - opt.qcp) * opt.qcn + i
                g = a0 + (6, 3, 0, 6)[i % 4]
                pin(g, q_load("C", ks)); qc_issued[ks] = j
        if j > 0:
            for f in range(8):
                for u in range(2): pin(a0 + 8 + 2 * f + u, v_read(j, f, u))
        else:
            for f in range(8):
                for u in range(2): pin(b0 + min(f, 4), v_read(j, f, u))
        for ks in range(8): pin(pa + ks, k_read((j + 1) % 12, ks))
        sa = []
        if j == 0: sa += rowmax("A", S[0], a0 + 9)
        sa += softmax("A", j, S[0], P[0], a0 + 9, pa - 2, pa + 2, "fma", after=sa[-1:])
        streams.append(sa)
        pbn = idx[("PV", "B", j)]
        sb_ = []
        if j == 0: sb_ += rowmax("B", S[1], b0 + 9)
        sb_ += softmax("B", j, S[1], P[1], b0 + 9, pbn - 2, pbn + 2, "fma", after=sb_[-1:])
        streams.append(sb_)
    c0 = idx[("QK", "C", 0)]
    rel = [idx[("QK", "A", min(11, qc_issued[k] + opt.qcd))] + 8 for k in range(8)]
    lowprio = [chain(prescale(rel, c0 - 2))]

    for j in range(12):
        q0 = idx[("QK", "C", j)]; p0 = idx[("PV", "C", j)]
        if j < 11:
            for ks in range(8): pin(q0 + ks, k_read(j + 1, ks))
        if 4 <= j + 1 <= 11:
            for f in range(8):
                for u in range(2): pin(p0 + f, v_read(j + 1, f, u))
        st = []; aft = []
        if j == 0:
            st += rowmax("C", S[0], q0 + 9); aft = st[-1:]
            st += [Op(f"v_mov_b32 v{NEGM+i}, v{vM['C']}", "V", rel=q0 + 9, due=idx[("QK", "C", 1)] - 2, deps=aft) for i in range(16)]
        d1 = p0 + 2 if j < 11 else p0 - 1
        st += softmax("C", j, S[j & 1], P[j & 1], q0 + 9, p0 - 2, d1, "add" if j == 0 else "raw", after=aft)
        streams.append(st)
    paA = idx[("PV", "A", 11)]; paB = idx[("PV", "B", 11)]; pc0 = idx[("PV", "C", 0)]; pcl = idx[("PV", "C", 11)]
    epiA = epilogue("A", paA + 3, [idx[("PVm", "A", 11, 1, b)] + 2 for b in range(4)], [pc0 + b - 1 for b in range(4)])
    epiB = epilogue("B", paB + 3, [idx[("PVm", "B", 11, 1, b)] + 2 for b in range(4)], [pcl - 9] * 4)
    epiC = epilogue("C", pcl, [idx[("PVm", "C", 11, 1, b)] + 2 for b in range(4)], [10**9] * 4)
    nst = 0
    for o in epiB:
        if o.kind == "ST":
            o.rel = max(o.rel, pc0 + 8 + opt.stpace * nst); nst += 1
    lowprio.append(chain(epiA + epiB + epiC))

    allops = [o for st in streams + lowprio for o in st]
    for o in reversed(allops):
        for d in o.deps: d.due = min(d.due, o.due)
    for k, st in enumerate(streams):
        for n, o in enumerate(st): o.prio = k * 1000 + n
    for k, st in enumerate(lowprio):
        for n, o in enumerate(st): o.prio = 10**6 + k * 10000 + n

    sched = [[] for _ in range(NM)]
    load = [0] * NM
    pending = sorted(allops, key=lambda o: o.prio)
    for g in range(NM):
        used = sum(o.cost for o in fixed[g]) + max(0, len(first[g]) - 1)
        stores, valu = [], []
        cand = [o for o in pending if o.rel <= g]
        for o in cand:
            if o.kind == "ST" and all(d.done for d in o.deps) and (used + 2 <= cap[g] or o.due <= g):
                stores.append(o); o.done = True; o.gap = g; used += 2
        while True:
            best = None
            for o in cand:
                if o.done or not all(d.done for d in o.deps): continue
                forced = o.due <= g
                if o.kind == "ST" and not forced: continue
                if not forced and used + o.cost > cap[g]: continue
                hazard = bool(valu) and valu[-1].trans and valu[-1] in o.deps and not o.trans
                if hazard and not forced: continue
                key = (0 if forced else 1, hazard, o.prio)
                if best is None or key < best[0]: best = (key, o)
            if best is None: break
            key, o = best
            if key[1]: valu.append(Op("s_nop 0", "V")); used += 1
            valu.append(o); o.done = True; o.gap = g; used += o.cost + (1 if o.kind == "ST" else 0)
        pending = [o for o in pending if not o.done]
        sched[g] = list(fixed[g]) + stores + valu
        load[g] = used
    tail = []
    for o in pending:
        if tail and tail[-1].trans: tail.append(Op("s_nop 0", "V"))
        tail.append(o)

    lg_seq = {}; vm_seq = {}; nlg = [0]; nvm = [0]; lg_gap = []
    lg_done = [0]; vm_done = [0]
    body = []
    def issue(o, g):
        if o.kind == "L":
            nlg[0] += 1; lg_seq[o.tag] = nlg[0]; lg_gap.append(g)
        elif o.kind in ("G", "ST"):
            nvm[0] += 1; vm_seq[o.tag] = nvm[0]
        body.append("  " + o.text)
    def wait_for(needs, g, extend):
        lg = max([lg_seq[n] for n in needs if n in lg_seq] + [0])
        vm = max([vm_seq[n] for n in needs if n in vm_seq] + [0])
        for n in needs:
            assert n in lg_seq or n in vm_seq, (n, g)
        parts = []
        if vm > vm_done[0]:
            parts.append(f"vmcnt({nvm[0]-vm})"); vm_done[0] = vm
            assert nvm[0] - vm <= 63
        if lg > lg_done[0]:
            if extend:
                k = lg
                while k < nlg[0] and lg_gap[k] <= g - 3: k += 1
                lg = k
            parts.append(f"lgkmcnt({min(15, nlg[0]-lg)})"); lg_done[0] = lg
        if parts: body.append("  s_waitcnt " + " ".join(parts))
        return bool(parts)
    for o in pro: issue(o, -10)
    body.append("  ; ---- first tile ----")
    wait_for([("DK", 0, 1)], -10, False)
    body.append("  s_barrier")
    for ks in range(8): issue(k_read(0, ks), -10)
    extra = 0
    for g in range(NM):
        late = [n for n in mf[g].needs if not ((n in lg_seq and lg_seq[n] <= lg_done[0]) or (n in vm_seq and vm_seq[n] <= vm_done[0]))]
        if late: wait_for(late, g, True)
        body.append("  " + mf[g].text)
        needs = []
        for o in first[g]:
            if o.kind == "W": needs += o.needs
        for o in sched[g]: needs += o.needs
        if g + 1 < NM:
            needs += [n for n in mf[g + 1].needs if n in lg_seq or n in vm_seq]
        look = g + 2
        while look < NM and any(o.kind == "S" for o in first[look - 1]):
            needs += [n for n in mf[look].needs if n in lg_seq and lg_gap[lg_seq[n] - 1] <= g - 3]
            look += 1
        w = wait_for(needs, g, True)
        sc = [o for o in first[g] if o.kind == "S"]
        if w and sc: extra += 1
        for o in sc: issue(o, g)
        for o in sched[g]: issue(o, g)
    body.append("  ; ---- tail ----")
    body.append("  s_nop 7"); body.append("  s_nop 3")
    for o in tail: issue(o, NM)
    if opt.verbose:
        over = sum(max(0, load[g] - cap[g]) for g in range(NM))
        print(f"; overflow slots {over}, extra scalar {extra}, tail ops {len(tail)}", file=sys.stderr)
        for g0 in range(0, NM, 32):
            print(g0, " ".join(str(load[g]) for g in range(g0, min(NM, g0 + 32))), file=sys.stderr)

    e(HEADER.rstrip("\n"))
    e(f""".amdgcn_target "amdgcn-amd-amdhsa--gfx950"
.text
.globl {KNAME}
.p2align 8
.type {KNAME},@function
{KNAME}:
  s_cmp_ge_u32 s2, 256
  s_cbranch_scc1 L_end
  s_load_dwordx4 s[4:7], s[0:1], 0
  s_load_dwordx4 s[52:55], s[0:1], 16
  v_lshrrev_b32 v1, 6, v0
  v_and_b32 v0, 63, v0
  s_and_b32 s3, s2, 7
  v_readfirstlane_b32 s31, v1
  s_lshr_b32 s50, s2, 4
  s_lshl_b32 s50, s50, 3
  s_add_u32 s3, s3, s50
  s_lshr_b32 s50, s2, 3
  s_and_b32 s50, s50, 1
  s_lshl_b32 s51, s3, 1
  s_add_u32 s51, s51, s50
  s_mul_i32 s3, s3, 98304
  s_mul_i32 s51, s51, 98304
  s_lshl_b32 s{sW2048}, s31, 11
  s_lshl_b32 s{sQoff['A']}, s31, 13
  s_add_u32 s{sQoff['B']}, s{sQoff['A']}, 32768
  s_add_u32 s{sQoff['C']}, s{sQoff['A']}, 65536
  s_mov_b32 s{sC}, {f2u(C_SCALE):#x}
  s_mov_b32 s{sMask}, 0xffff0000
  s_mov_b32 s{sT}, {f2u(2.0**30):#x}""")
    for j in range(12): e(f"  s_mov_b32 s{sOff+j}, {8192*j}")
    e(f"""  v_and_b32 v20, 31, v0
  v_lshrrev_b32 v21, 5, v0
  v_lshlrev_b32 v{vQ}, 8, v20
  v_lshl_add_u32 v{vQ}, v21, 4, v{vQ}
  v_and_b32 v22, 3, v0
  v_bfe_u32 v23, v0, 2, 2
  v_lshrrev_b32 v24, 4, v0
  v_lshlrev_b32 v{vDV}, 8, v23
  v_lshl_add_u32 v{vDV}, v24, 6, v{vDV}
  v_add_u32 v{vDV}, s{sW2048}, v{vDV}
  s_lshl_b32 s50, s31, 1
  s_and_b32 s50, s50, 3
  v_xor_b32 v25, s50, v22
  v_lshl_add_u32 v{vDK0}, v25, 4, v{vDV}
  v_xor_b32 v{vDK1}, 16, v{vDK0}
  v_lshl_add_u32 v{vDV}, v22, 4, v{vDV}
  s_waitcnt lgkmcnt(0)
  s_add_u32 s{sQ}, s4, s51
  s_addc_u32 s{sQ+1}, s5, 0
  s_and_b32 s{sQ+1}, s{sQ+1}, 0xffff
  s_mov_b32 s{sQ+2}, 98304
  s_mov_b32 s{sQ+3}, 0x20000
  s_add_u32 s{sK}, s6, s3
  s_addc_u32 s{sK+1}, s7, 0
  s_and_b32 s{sK+1}, s{sK+1}, 0xffff
  s_mov_b32 s{sK+2}, 98304
  s_mov_b32 s{sK+3}, 0x20000
  s_add_u32 s{sV}, s52, s3
  s_addc_u32 s{sV+1}, s53, 0
  s_and_b32 s{sV+1}, s{sV+1}, 0xffff
  s_mov_b32 s{sV+2}, 98304
  s_mov_b32 s{sV+3}, 0x20000
  s_add_u32 s{sO}, s54, s51
  s_addc_u32 s{sO+1}, s55, 0
  s_and_b32 s{sO+1}, s{sO+1}, 0xffff
  s_mov_b32 s{sO+2}, 98304
  s_mov_b32 s{sO+3}, 0x20000""")
    addr = f"""  v_and_b32 v20, 31, v0
  v_lshrrev_b32 v21, 5, v0
  v_lshrrev_b32 v22, 2, v20
  v_and_b32 v23, 3, v20
  v_lshlrev_b32 v24, 10, v22
  v_lshl_add_u32 v24, v23, 6, v24
  v_and_b32 v22, 3, v22
  v_xor_b32 v22, v22, v21
  v_lshl_add_u32 v{vKa[0]}, v22, 4, v24
  v_xor_b32 v{vKa[1]}, 32, v{vKa[0]}
  v_add_u32 v{vKb[0]}, 0x10000, v{vKa[0]}
  v_add_u32 v{vKb[1]}, 0x10000, v{vKa[1]}
  v_bfe_u32 v22, v0, 2, 2
  v_lshlrev_b32 v24, 10, v21
  v_lshl_add_u32 v24, v22, 6, v24
  v_bfe_u32 v22, v0, 4, 1
  v_lshl_add_u32 v24, v22, 5, v24
  v_and_b32 v22, 1, v0
  v_lshl_add_u32 v24, v22, 4, v24
  v_bfe_u32 v22, v0, 1, 1
  v_lshl_add_u32 v24, v22, 3, v24
  v_add_u32 v{vVa}, 81920, v24
  v_add_u32 v{vVb}, 98304, v24"""
    k = body.index("  ; ---- first tile ----")
    e("\n".join(body[:k])); e(addr); e("\n".join(body[k:]))
    e(slow_path(NT_O))
    e(f"""L_end:
  s_endpgm
.section .rodata,"a"
.p2align 6
.amdhsa_kernel {KNAME}
  .amdhsa_next_free_vgpr 512
  .amdhsa_next_free_sgpr 102
  .amdhsa_accum_offset 256
  .amdhsa_group_segment_fixed_size 0
  .amdhsa_kernarg_size 48
  .amdhsa_user_sgpr_count 2
  .amdhsa_user_sgpr_kernarg_segment_ptr 1
  .amdhsa_system_sgpr_workgroup_id_x 1
.end_amdhsa_kernel""")
    return "\n".join(out) + "\n"

def slow_path(NT_O):
    o = []; e = o.append
    q, kf, ob, s, p, vt, vf = 32, 64, 96, 160, 192, 200, 232
    vm, vl, vg, vt0 = 14, 11, 20, 18
    e("  s_nop 4")
    e(f"  s_or_b64 s[50:51], {sr(sFlag['A'],2)}, {sr(sFlag['B'],2)}")
    e(f"  s_or_b64 s[50:51], s[50:51], {sr(sFlag['C'],2)}")
    e("  s_cbranch_scc0 L_end")
    e("  s_mov_b32 s56, 0")
    for i, t in enumerate("ABC"):
        e(f"  s_cmp_lg_u64 {sr(sFlag[t],2)}, 0")
        e(f"  s_cselect_b32 s57, {1<<i}, 0")
        e("  s_or_b32 s56, s56, s57")
    e(f"""  v_and_b32 v21, 31, v0
  v_lshrrev_b32 v22, 5, v0
  v_lshlrev_b32 v{vg}, 10, v22
  v_bfe_u32 v23, v21, 4, 1
  v_lshl_add_u32 v{vg}, v23, 5, v{vg}
  v_bfe_u32 v23, v21, 2, 1
  v_lshl_add_u32 v{vg}, v23, 4, v{vg}
  v_bfe_u32 v23, v21, 3, 1
  v_lshl_add_u32 v{vg}, v23, 3, v{vg}
  v_and_b32 v23, 3, v21
  v_lshl_add_u32 v{vg}, v23, 1, v{vg}
  s_mov_b32 s57, 0
  s_mov_b32 s58, s{sQoff['A']}
L_slow_tile:
  s_bitcmp1_b32 s56, s57
  s_cbranch_scc0 L_slow_next
  s_waitcnt vmcnt(0)""")
    for ks in range(8): e(f"  buffer_load_dwordx4 {vr(q+4*ks,4)}, v{vQ}, {sr(sQ,4)}, s58 offen offset:{32*ks}")
    def qk():
        for ks in range(8): e(f"  buffer_load_dwordx4 {vr(kf+4*ks,4)}, v{vQ}, {sr(sK,4)}, s59 offen offset:{32*ks}")
        e("  s_waitcnt vmcnt(0)")
        for ks in range(8):
            e(f"  v_mfma_f32_32x32x16_bf16 {vr(s,16)}, {vr(kf+4*ks,4)}, {vr(q+4*ks,4)}, {vr(s,16) if ks else '0'}")
        e("  s_nop 15")
    e(f"  v_mov_b32 v{vm}, 0xff800000")
    e("  s_mov_b32 s59, 0")
    e("L_slow_max:")
    qk()
    for r in range(0, 16, 2): e(f"  v_max3_f32 v{vm}, v{vm}, v{s+r}, v{s+r+1}")
    e("""  s_add_u32 s59, s59, 8192
  s_cmp_lt_u32 s59, 98304
  s_cbranch_scc1 L_slow_max""")
    e(f"""  v_mov_b32 v{vt0}, v{vm}
  s_nop 1
  v_permlane32_swap_b32 v{vm}, v{vt0}
  v_max_f32 v{vm}, v{vm}, v{vt0}
  v_mov_b32 v{vl}, 0""")
    for r in range(64): e(f"  v_mov_b32 v{ob+r}, 0")
    e("  s_mov_b32 s59, 0")
    e("L_slow_pv:")
    qk()
    for r in range(16): e(f"  v_sub_f32 v{s+r}, v{s+r}, v{vm}")
    for r in range(16): e(f"  v_mul_f32 v{s+r}, s{sC}, v{s+r}")
    for r in range(16): e(f"  v_exp_f32 v{s+r}, v{s+r}")
    e("  s_nop 1")
    for r in range(16): e(f"  v_add_f32 v{vl}, v{vl}, v{s+r}")
    for i in range(8): e(f"  v_cvt_pk_bf16_f32 v{p+i}, v{s+2*i}, v{s+2*i+1}")
    for t in range(2):
        e(f"  s_add_u32 s60, s59, {4096*t}")
        for b in range(4):
            for jj in range(8):
                e(f"  buffer_load_ushort v{vt+8*b+jj}, v{vg}, {sr(sV,4)}, s60 offen offset:{(8*(jj>>2)+(jj&3))*256+64*b}")
        e("  s_waitcnt vmcnt(0)")
        for b in range(4):
            for i in range(4):
                e(f"  v_lshl_or_b32 v{vf+4*b+i}, v{vt+8*b+2*i+1}, 16, v{vt+8*b+2*i}")
        e("  s_nop 1")
        for b in range(4):
            e(f"  v_mfma_f32_32x32x16_bf16 {vr(ob+16*b,16)}, {vr(vf+4*b,4)}, {vr(p+4*t,4)}, {vr(ob+16*b,16)}")
        e("  s_nop 7")
    e("""  s_add_u32 s59, s59, 8192
  s_cmp_lt_u32 s59, 98304
  s_cbranch_scc1 L_slow_pv
  s_nop 15""")
    e(f"""  v_mov_b32 v{vt0}, v{vl}
  s_nop 1
  v_permlane32_swap_b32 v{vl}, v{vt0}
  v_add_f32 v{vl}, v{vl}, v{vt0}
  v_rcp_f32 v{vl}, v{vl}
  s_nop 1""")
    for b in range(4):
        for ss in range(2):
            base = ob + 16 * b + 8 * ss; tmp = q + 8 * b + 4 * ss
            for i in range(8): e(f"  v_mul_f32 v{base+i}, v{vl}, v{base+i}")
            for i in range(4): e(f"  v_cvt_pk_bf16_f32 v{tmp+i}, v{base+2*i}, v{base+2*i+1}")
            e(f"  buffer_store_dwordx4 {vr(tmp,4)}, v{vQ}, {sr(sO,4)}, s58 offen offset:{64*b+32*ss}")
    e("""L_slow_next:
  s_add_u32 s57, s57, 1
  s_add_u32 s58, s58, 32768
  s_cmp_lt_u32 s57, 3
  s_cbranch_scc1 L_slow_tile""")
    return "\n".join(o)

if __name__ == "__main__":
    ap = argparse.ArgumentParser()
    ap.add_argument("-o", default="standalone__gqa_softmax__near_ridge.s")
    ap.add_argument("--la", type=int, default=4)
    ap.add_argument("--qcp", type=int, default=2)
    ap.add_argument("--qcn", type=int, default=2)
    ap.add_argument("--qcd", type=int, default=3)
    ap.add_argument("--stpace", type=int, default=14)
    ap.add_argument("--ntq", type=int, default=0)
    ap.add_argument("--ntkv", type=int, default=0)
    ap.add_argument("--nto", type=int, default=0)
    ap.add_argument("--verbose", type=int, default=1)
    opt = ap.parse_args()
    open(opt.o, "w").write(gen(opt))
```

```python
import sys, math, argparse

KNAME = "standalone__gqa_softmax__near_ridge_kernel"
HEADER = """; Kernarg layout for this problem (48 bytes, ptrs only, base s[0:1]):
; @launch grid=(256,1,1) block=(256,1,1) lds=163840
"""

C_SCALE = (128 ** -0.5) * math.log2(math.e)
def f2u(x):
    import struct
    return struct.unpack("<I", struct.pack("<f", x))[0]

vQ, vDK0, vDK1, vDV = 1, 2, 3, 4
vKa = [5, 6]; vKb = [7, 8]; vVa, vVb = 9, 10
vL = {"A": 11, "B": 12, "C": 13}
vM = {"A": 14, "B": 15, "C": 14}
vR = {"A": 16, "B": 17, "C": 16}
vT0, vT1 = 18, 19
vX = 20
vE = [24, 28]
O = {"A": 32, "B": 96, "C": 32}
S = [160, 176]
P = [192, 200]
QC = 208
NEGM = 240
aQ = {"A": 0, "B": 32}
aK, aV, aVres = 64, 96, 128
sQ, sK, sV, sO = 8, 12, 16, 20
sW2048, sC, sMask, sT = 24, 25, 26, 27
sQoff = {"A": 28, "B": 29, "C": 30}
sOff = 32
sFlag = {"A": 44, "B": 46, "C": 48}
sTmp = 50

def vr(b, n): return f"v[{b}:{b+n-1}]"
def ar(b, n): return f"a[{b}:{b+n-1}]"
def sr(b, n): return f"s[{b}:{b+n-1}]"

KSLOT = {j: j for j in range(12)}
VSLOT = {j: 8 + j for j in range(4, 12)}
VSLOT.update({0: 10, 1: 18, 2: 11, 3: 19})
def k_addr(j, ks):
    off = KSLOT[j] * 8192 + 256 * (ks >> 1)
    if off < 65536: return vKa[ks & 1], off
    return vKb[ks & 1], off - 65536
def v_addr(j, t, u, b):
    off = VSLOT[j] * 8192 + t * 4096 + u * 2048 + b * 256
    if VSLOT[j] < 12: return vVa, off - 81920
    return vVb, off - 98304
def v_regs(j): return aVres + 32 * j if j < 4 else aV

class Op:
    __slots__ = ("text", "kind", "cost", "rel", "due", "needs", "tag", "gap", "deps", "trans", "prio", "done")
    def __init__(self, text, kind, cost=1, rel=0, due=10**9, needs=(), tag=None, deps=(), trans=False):
        self.text, self.kind, self.cost, self.rel, self.due = text, kind, cost, rel, due
        self.needs, self.tag, self.gap = list(needs), tag, None
        self.deps, self.trans, self.prio, self.done = list(deps), trans, 0.0, False

def chain(ops, after=()):
    prev = list(after)
    for o in ops:
        o.deps += prev; prev = [o]
    return ops

def gen(opt):
    NT_Q = " nt" if opt.ntq else ""
    NT_KV = " nt" if opt.ntkv else ""
    NT_O = " nt" if opt.nto else ""
    LA = opt.la
    out = []
    e = out.append

    mf = []
    idx = {}
    def qk(t, j, sb):
        idx[("QK", t, j)] = len(mf)
        for ks in range(8):
            bq = ar(aQ[t] + 4 * ks, 4) if t != "C" else vr(QC + 4 * ks, 4)
            c = vr(sb, 16) if ks else (vr(NEGM, 16) if (t == "C" and j > 0) else "0")
            needs = [("K", j, ks)]
            if j == 0 and t != "C": needs.append(("Q", t, ks))
            mf.append(Op(f"v_mfma_f32_32x32x16_bf16 {vr(sb,16)}, {ar(aK+4*ks,4)}, {bq}, {c}", "M", needs=needs))
    def pv(t, j, pb, blockmajor=False):
        idx[("PV", t, j)] = len(mf)
        order = [(tt, b) for tt in range(2) for b in range(4)]
        if blockmajor: order = [(tt, b) for b in range(4) for tt in range(2)]
        for (tt, b) in order:
            f = 4 * tt + b
            d = vr(O[t] + 16 * b, 16)
            c = "0" if (j == 0 and tt == 0) else d
            idx[("PVm", t, j, tt, b)] = len(mf)
            mf.append(Op(f"v_mfma_f32_32x32x16_bf16 {d}, {ar(v_regs(j)+4*f,4)}, {vr(pb+4*tt,4)}, {c}", "M",
                         needs=[("V", j, f)] if not (t == "C" and j < 4) else []))
    for j in range(12):
        qk("A", j, S[0])
        if j > 0: pv("B", j - 1, P[1])
        qk("B", j, S[1])
        pv("A", j, P[0])
    qk("C", 0, S[0]); pv("B", 11, P[1])
    for j in range(12):
        if j < 11: qk("C", j + 1, S[(j + 1) & 1])
        pv("C", j, P[j & 1], blockmajor=(j == 11))
    NM = len(mf)
    assert NM == 576

    fixed = [[] for _ in range(NM)]
    first = [[] for _ in range(NM)]
    cap = [6] * NM
    streams = []

    def pin(g, op): fixed[g].append(op)

    def dma_pair(kind, j):
        slot = KSLOT[j] if kind == "K" else VSLOT[j]
        srd = sK if kind == "K" else sV
        va = (vDK0, vDK1) if kind == "K" else (vDV, vDV)
        m0 = Op(f"s_add_u32 m0, s{sW2048}, {slot*8192}", "S")
        d = [Op(f"buffer_load_dwordx4 v{va[i]}, {sr(srd,4)}, s{sOff+j} offen offset:{1024*i}{NT_KV} lds", "G", 2,
                tag=("D" + kind, j, i)) for i in range(2)]
        return m0, d
    def q_load(t, ks):
        dst = ar(aQ[t] + 4 * ks, 4) if t != "C" else vr(QC + 4 * ks, 4)
        return Op(f"buffer_load_dwordx4 {dst}, v{vQ}, {sr(sQ,4)}, s{sQoff[t]} offen offset:{32*ks}{NT_Q}", "G", 2, tag=("Q", t, ks))
    def k_read(j, ks):
        a, off = k_addr(j, ks)
        return Op(f"ds_read_b128 {ar(aK+4*ks,4)}, v{a} offset:{off}", "L", 1, tag=("K", j, ks))
    def v_read(j, f, u):
        tt, b = f >> 2, f & 3
        a, off = v_addr(j, tt, u, b)
        return Op(f"ds_read_b64_tr_b16 {ar(v_regs(j)+4*f+2*u,2)}, v{a} offset:{off}", "L", 1,
                  tag=("V", j, f) if u else ("Vh", j, f))

    lastl = {}
    def softmax(t, j, sb, pb, rel, due0, due1, mode, after=()):
        ops = []
        pre, ex = {}, {}
        def mkpre(r):
            if mode == "fma": o = Op(f"v_fma_f32 v{sb+r}, v{sb+r}, s{sC}, v{vM[t]}", "V", deps=after)
            elif mode == "add": o = Op(f"v_add_f32 v{sb+r}, v{vM[t]}, v{sb+r}", "V", deps=after)
            else: return []
            pre[r] = o
            return [o]
        ops += mkpre(0) + mkpre(1)
        for i in range(8):
            r = 2 * i
            for x in (r, r + 1):
                ex[x] = Op(f"v_exp_f32 v{sb+x}, v{sb+x}", "V", 2, deps=[pre[x]] if x in pre else after, trans=True)
                ops.append(ex[x])
            if i < 7: ops += mkpre(r + 2) + mkpre(r + 3)
            for x in (r, r + 1):
                txt = f"v_mov_b32 v{vL[t]}, v{sb}" if (j == 0 and x == 0) else f"v_add_f32 v{vL[t]}, v{vL[t]}, v{sb+x}"
                a = Op(txt, "V", deps=[ex[x]] + ([lastl[t]] if t in lastl else []), due=due1)
                lastl[t] = a; ops.append(a)
            ops.append(Op(f"v_cvt_pk_bf16_f32 v{pb+i}, v{sb+r}, v{sb+r+1}", "V", deps=[ex[r], ex[r + 1]],
                          due=due0 if i < 4 else due1))
        for o in ops: o.rel = rel
        return ops
    def rowmax(t, sb, rel):
        m = vM[t]
        ops = [Op(f"v_max3_f32 v{m}, v{sb}, v{sb+1}, v{sb+2}", "V")]
        for r in range(3, 15, 2):
            ops.append(Op(f"v_max3_f32 v{m}, v{m}, v{sb+r}, v{sb+r+1}", "V"))
        ops.append(Op(f"v_max_f32 v{m}, v{m}, v{sb+15}", "V"))
        ops.append(Op(f"v_mov_b32 v{vT0}, v{m}", "V"))
        ops.append(Op("s_nop 1", "V", 2))
        ops.append(Op(f"v_permlane32_swap_b32 v{m}, v{vT0}", "V"))
        ops.append(Op(f"v_max_f32 v{m}, v{m}, v{vT0}", "V"))
        if t == "C": ops.append(Op(f"v_sub_f32 v{m}, 0, v{m}", "V"))
        else: ops.append(Op(f"v_mul_f32 v{m}, s{sC}, v{m}", "V")); ops.append(Op(f"v_sub_f32 v{m}, 0, v{m}", "V"))
        for o in ops: o.rel = rel
        return chain(ops)
    ecnt = [0]
    def epilogue(t, rel_l, rel_blk, due_blk):
        l, r = vL[t], vR[t]
        ops = [Op(f"v_mov_b32 v{vT1}, v{l}", "V"), Op("s_nop 1", "V", 2),
               Op(f"v_permlane32_swap_b32 v{l}, v{vT1}", "V"),
               Op(f"v_add_f32 v{l}, v{l}, v{vT1}", "V"),
               Op(f"v_rcp_f32 v{r}, v{l}", "V", 2, trans=True),
               Op(f"v_cmp_nle_f32_e64 {sr(sFlag[t],2)}, v{l}, s{sT}", "V")]
        for o in ops: o.rel = rel_l
        ops[0].deps.append(lastl[t])
        for b in range(4):
            for s in range(2):
                tmp = vE[ecnt[0] & 1]; ecnt[0] += 1
                base = O[t] + 16 * b + 8 * s
                blk = []
                for i in range(4):
                    blk.append(Op(f"v_mul_f32 v{base+2*i}, v{r}, v{base+2*i}", "V"))
                    blk.append(Op(f"v_mul_f32 v{base+2*i+1}, v{r}, v{base+2*i+1}", "V"))
                    blk.append(Op(f"v_cvt_pk_bf16_f32 v{tmp+i}, v{base+2*i}, v{base+2*i+1}", "V"))
                for o in blk: o.rel = rel_blk[b]; o.due = due_blk[b]
                st = Op(f"buffer_store_dwordx4 {vr(tmp,4)}, v{vQ}, {sr(sO,4)}, s{sQoff[t]} offen offset:{64*b+32*s}{NT_O}", "ST", 2,
                        tag=("ST", t, b, s))
                st.rel = rel_blk[b]; st.due = due_blk[b]
                ops += blk + [st]
        return ops
    def prescale(rel, due):
        ops = []
        for i in range(32):
            r = QC + i
            blk = [Op(f"v_lshlrev_b32 v{vX}, 16, v{r}", "V", needs=[("Q", "C", i >> 2)]),
                   Op(f"v_and_b32 v{r}, s{sMask}, v{r}", "V"),
                   Op(f"v_mul_f32 v{vX}, s{sC}, v{vX}", "V"),
                   Op(f"v_mul_f32 v{r}, s{sC}, v{r}", "V"),
                   Op(f"v_cvt_pk_bf16_f32 v{r}, v{vX}, v{r}", "V")]
            for o in blk: o.rel = rel[i >> 2]; o.due = due
            ops += blk
        return ops

    pro = []
    pro += [q_load("A", ks) for ks in range(8)]
    m0, d = dma_pair("K", 0); pro += [m0, Op("s_nop 0", "S")] + d
    pro += [q_load("B", ks) for ks in range(8)]
    for g in range(LA):
        for kind, j in (("V", g), ("K", g + 1)):
            m0, d = dma_pair(kind, j); pro += [m0, Op("s_nop 0", "S")] + d

    qc_issued = {}
    for j in range(12):
        a0 = idx[("QK", "A", j)]; b0 = idx[("QK", "B", j)]; pa = idx[("PV", "A", j)]
        bar = a0 + 7
        need = [("DV", j, 1)] + ([("DK", j + 1, 1)] if j < 11 else [])
        first[bar].append(Op("", "W", needs=need))
        pin(bar, Op("s_barrier", "B", 0)); cap[bar] = 2
        if j + LA <= 11:
            m0, d = dma_pair("V", j + LA); first[a0].append(m0); pin(a0 + 1, d[0]); pin(a0 + 2, d[1])
        if j + LA + 1 <= 11:
            m0, d = dma_pair("K", j + LA + 1); first[a0 + 3].append(m0); pin(a0 + 4, d[0]); pin(a0 + 5, d[1])
        if opt.qcp <= j < opt.qcp + 8 // opt.qcn:
            for i in range(opt.qcn):
                ks = (j - opt.qcp) * opt.qcn + i
                g = a0 + (6, 3, 0, 6)[i % 4]
                pin(g, q_load("C", ks)); qc_issued[ks] = j
        if j > 0:
            for f in range(8):
                for u in range(2): pin(a0 + 8 + 2 * f + u, v_read(j, f, u))
        else:
            for f in range(8):
                for u in range(2): pin(b0 + min(f, 4), v_read(j, f, u))
        for ks in range(8): pin(pa + ks, k_read((j + 1) % 12, ks))
        sa = []
        if j == 0: sa += rowmax("A", S[0], a0 + 9)
        sa += softmax("A", j, S[0], P[0], a0 + 9, pa - 2, pa + 2, "fma", after=sa[-1:])
        streams.append(sa)
        pbn = idx[("PV", "B", j)]
        sb_ = []
        if j == 0: sb_ += rowmax("B", S[1], b0 + 9)
        sb_ += softmax("B", j, S[1], P[1], b0 + 9, pbn - 2, pbn + 2, "fma", after=sb_[-1:])
        streams.append(sb_)
    c0 = idx[("QK", "C", 0)]
    rel = [idx[("QK", "A", min(11, qc_issued[k] + opt.qcd))] + 8 for k in range(8)]
    lowprio = [chain(prescale(rel, c0 - 2))]

    for j in range(12):
        q0 = idx[("QK", "C", j)]; p0 = idx[("PV", "C", j)]
        if j < 11:
            for ks in range(8): pin(q0 + ks, k_read(j + 1, ks))
        if 4 <= j + 1 <= 11:
            for f in range(8):
                for u in range(2): pin(p0 + f, v_read(j + 1, f, u))
        st = []; aft = []
        if j == 0:
            st += rowmax("C", S[0], q0 + 9); aft = st[-1:]
            st += [Op(f"v_mov_b32 v{NEGM+i}, v{vM['C']}", "V", rel=q0 + 9, due=idx[("QK", "C", 1)] - 2, deps=aft) for i in range(16)]
        d1 = p0 + 2 if j < 11 else p0 - 1
        st += softmax("C", j, S[j & 1], P[j & 1], q0 + 9, p0 - 2, d1, "add" if j == 0 else "raw", after=aft)
        streams.append(st)
    paA = idx[("PV", "A", 11)]; paB = idx[("PV", "B", 11)]; pc0 = idx[("PV", "C", 0)]; pcl = idx[("PV", "C", 11)]
    epiA = epilogue("A", paA + 3, [idx[("PVm", "A", 11, 1, b)] + 2 for b in range(4)], [pc0 + b - 1 for b in range(4)])
    epiB = epilogue("B", paB + 3, [idx[("PVm", "B", 11, 1, b)] + 2 for b in range(4)], [pcl - 9] * 4)
    epiC = epilogue("C", pcl, [idx[("PVm", "C", 11, 1, b)] + 2 for b in range(4)], [10**9] * 4)
    nst = 0
    for o in epiB:
        if o.kind == "ST":
            o.rel = max(o.rel, pc0 + 8 + opt.stpace * nst); nst += 1
    lowprio.append(chain(epiA + epiB + epiC))

    allops = [o for st in streams + lowprio for o in st]
    for o in reversed(allops):
        for d in o.deps: d.due = min(d.due, o.due)
    for k, st in enumerate(streams):
        for n, o in enumerate(st): o.prio = k * 1000 + n
    for k, st in enumerate(lowprio):
        for n, o in enumerate(st): o.prio = 10**6 + k * 10000 + n

    sched = [[] for _ in range(NM)]
    load = [0] * NM
    pending = sorted(allops, key=lambda o: o.prio)
    for g in range(NM):
        used = sum(o.cost for o in fixed[g]) + max(0, len(first[g]) - 1)
        stores, valu = [], []
        cand = [o for o in pending if o.rel <= g]
        for o in cand:
            if o.kind == "ST" and all(d.done for d in o.deps) and (used + 2 <= cap[g] or o.due <= g):
                stores.append(o); o.done = True; o.gap = g; used += 2
        while True:
            best = None
            for o in cand:
                if o.done or not all(d.done for d in o.deps): continue
                forced = o.due <= g
                if o.kind == "ST" and not forced: continue
                if not forced and used + o.cost > cap[g]: continue
                hazard = bool(valu) and valu[-1].trans and valu[-1] in o.deps and not o.trans
                if hazard and not forced: continue
                key = (0 if forced else 1, hazard, o.prio)
                if best is None or key < best[0]: best = (key, o)
            if best is None: break
            key, o = best
            if key[1]: valu.append(Op("s_nop 0", "V")); used += 1
            valu.append(o); o.done = True; o.gap = g; used += o.cost + (1 if o.kind == "ST" else 0)
        pending = [o for o in pending if not o.done]
        sched[g] = list(fixed[g]) + stores + valu
        load[g] = used
    tail = []
    for o in pending:
        if tail and tail[-1].trans: tail.append(Op("s_nop 0", "V"))
        tail.append(o)

    lg_seq = {}; vm_seq = {}; nlg = [0]; nvm = [0]; lg_gap = []
    lg_done = [0]; vm_done = [0]
    body = []
    def issue(o, g):
        if o.kind == "L":
            nlg[0] += 1; lg_seq[o.tag] = nlg[0]; lg_gap.append(g)
        elif o.kind in ("G", "ST"):
            nvm[0] += 1; vm_seq[o.tag] = nvm[0]
        body.append("  " + o.text)
    def wait_for(needs, g, extend):
        lg = max([lg_seq[n] for n in needs if n in lg_seq] + [0])
        vm = max([vm_seq[n] for n in needs if n in vm_seq] + [0])
        for n in needs:
            assert n in lg_seq or n in vm_seq, (n, g)
        parts = []
        if vm > vm_done[0]:
            parts.append(f"vmcnt({nvm[0]-vm})"); vm_done[0] = vm
            assert nvm[0] - vm <= 63
        if lg > lg_done[0]:
            if extend:
                k = lg
                while k < nlg[0] and lg_gap[k] <= g - 3: k += 1
                lg = k
            parts.append(f"lgkmcnt({min(15, nlg[0]-lg)})"); lg_done[0] = lg
        if parts: body.append("  s_waitcnt " + " ".join(parts))
        return bool(parts)
    nstamp = [1]
    def stamp():
        if not opt.stamp: return
        k = nstamp[0]; nstamp[0] += 1
        body.append(f"  {'s_memtime' if opt.stamp == 2 else 's_memrealtime'} s[{64+2*k}:{65+2*k}]")
        body.append("  s_waitcnt lgkmcnt(0)"); lg_done[0] = nlg[0]
    stamp_at = set()
    if opt.stamp:
        stamp_at = {idx[("QK", "A", j)] for j in (1, 2, 3, 4, 6, 8, 10)} | {idx[("QK", "C", j)] for j in (0, 1, 4, 8)}
    for o in pro: issue(o, -10)
    stamp()
    body.append("  ; ---- first tile ----")
    wait_for([("DK", 0, 1)], -10, False)
    body.append("  s_barrier")
    stamp()
    for ks in range(8): issue(k_read(0, ks), -10)
    extra = 0
    for g in range(NM):
        late = [n for n in mf[g].needs if not ((n in lg_seq and lg_seq[n] <= lg_done[0]) or (n in vm_seq and vm_seq[n] <= vm_done[0]))]
        if late: wait_for(late, g, True)
        if g in stamp_at: stamp()
        body.append("  " + mf[g].text)
        needs = []
        for o in first[g]:
            if o.kind == "W": needs += o.needs
        for o in sched[g]: needs += o.needs
        if g + 1 < NM:
            needs += [n for n in mf[g + 1].needs if n in lg_seq or n in vm_seq]
        look = g + 2
        while look < NM and any(o.kind == "S" for o in first[look - 1]):
            needs += [n for n in mf[look].needs if n in lg_seq and lg_gap[lg_seq[n] - 1] <= g - 3]
            look += 1
        w = wait_for(needs, g, True)
        sc = [o for o in first[g] if o.kind == "S"]
        if w and sc: extra += 1
        for o in sc: issue(o, g)
        for o in sched[g]: issue(o, g)
    body.append("  ; ---- tail ----")
    body.append("  s_nop 7"); body.append("  s_nop 3")
    stamp()
    for o in tail: issue(o, NM)
    stamp()
    if opt.stamp:
        body.append("  s_waitcnt vmcnt(0)")
        stamp()
        n = nstamp[0]
        body.append("  s_load_dwordx2 s[60:61], s[0:1], 40")
        body.append("  s_waitcnt lgkmcnt(0)")
        body.append("  s_and_b32 s61, s61, 0xffff\n  s_mov_b32 s62, 0x1000000\n  s_mov_b32 s63, 0x20000")
        body.append("  s_lshl_b32 s57, s2, 2\n  s_add_u32 s57, s57, s31\n  s_lshl_b32 s57, s57, 7")
        body.append("  v_mov_b32 v21, 0")
        for k in range(n):
            body.append(f"  v_mov_b32 v20, s{64+2*k}")
            body.append(f"  buffer_store_dword v20, v21, s[60:63], s57 offen offset:{4*k}")
        body.append("  s_waitcnt vmcnt(0)")
    if opt.verbose:
        over = sum(max(0, load[g] - cap[g]) for g in range(NM))
        print(f"; overflow slots {over}, extra scalar {extra}, tail ops {len(tail)}", file=sys.stderr)
        for g0 in range(0, NM, 32):
            print(g0, " ".join(str(load[g]) for g in range(g0, min(NM, g0 + 32))), file=sys.stderr)

    e(HEADER.rstrip("\n"))
    e(f""".amdgcn_target "amdgcn-amd-amdhsa--gfx950"
.text
.globl {KNAME}
.p2align 8
.type {KNAME},@function
{KNAME}:
  s_cmp_ge_u32 s2, 256
  s_cbranch_scc1 L_end
{"  s_memrealtime s[64:65]" if opt.stamp == 1 else "  s_memtime s[64:65]" if opt.stamp == 2 else ""}
  s_load_dwordx4 s[4:7], s[0:1], 0
  s_load_dwordx4 s[52:55], s[0:1], 16
  v_lshrrev_b32 v1, 6, v0
  v_and_b32 v0, 63, v0
  s_and_b32 s3, s2, 7
  v_readfirstlane_b32 s31, v1
  s_lshr_b32 s50, s2, 4
  s_lshl_b32 s50, s50, 3
  s_add_u32 s3, s3, s50
  s_lshr_b32 s50, s2, 3
  s_and_b32 s50, s50, 1
  s_lshl_b32 s51, s3, 1
  s_add_u32 s51, s51, s50
  s_mul_i32 s3, s3, 98304
  s_mul_i32 s51, s51, 98304
  s_lshl_b32 s{sW2048}, s31, 11
  s_lshl_b32 s{sQoff['A']}, s31, 13
  s_add_u32 s{sQoff['B']}, s{sQoff['A']}, 32768
  s_add_u32 s{sQoff['C']}, s{sQoff['A']}, 65536
  s_mov_b32 s{sC}, {f2u(C_SCALE):#x}
  s_mov_b32 s{sMask}, 0xffff0000
  s_mov_b32 s{sT}, {f2u(2.0**30):#x}""")
    for j in range(12): e(f"  s_mov_b32 s{sOff+j}, {8192*j}")
    e(f"""  v_and_b32 v20, 31, v0
  v_lshrrev_b32 v21, 5, v0
  v_lshlrev_b32 v{vQ}, 8, v20
  v_lshl_add_u32 v{vQ}, v21, 4, v{vQ}
  v_and_b32 v22, 3, v0
  v_bfe_u32 v23, v0, 2, 2
  v_lshrrev_b32 v24, 4, v0
  v_lshlrev_b32 v{vDV}, 8, v23
  v_lshl_add_u32 v{vDV}, v24, 6, v{vDV}
  v_add_u32 v{vDV}, s{sW2048}, v{vDV}
  s_lshl_b32 s50, s31, 1
  s_and_b32 s50, s50, 3
  v_xor_b32 v25, s50, v22
  v_lshl_add_u32 v{vDK0}, v25, 4, v{vDV}
  v_xor_b32 v{vDK1}, 16, v{vDK0}
  v_lshl_add_u32 v{vDV}, v22, 4, v{vDV}
  s_waitcnt lgkmcnt(0)
  s_add_u32 s{sQ}, s4, s51
  s_addc_u32 s{sQ+1}, s5, 0
  s_and_b32 s{sQ+1}, s{sQ+1}, 0xffff
  s_mov_b32 s{sQ+2}, 98304
  s_mov_b32 s{sQ+3}, 0x20000
  s_add_u32 s{sK}, s6, s3
  s_addc_u32 s{sK+1}, s7, 0
  s_and_b32 s{sK+1}, s{sK+1}, 0xffff
  s_mov_b32 s{sK+2}, 98304
  s_mov_b32 s{sK+3}, 0x20000
  s_add_u32 s{sV}, s52, s3
  s_addc_u32 s{sV+1}, s53, 0
  s_and_b32 s{sV+1}, s{sV+1}, 0xffff
  s_mov_b32 s{sV+2}, 98304
  s_mov_b32 s{sV+3}, 0x20000
  s_add_u32 s{sO}, s54, s51
  s_addc_u32 s{sO+1}, s55, 0
  s_and_b32 s{sO+1}, s{sO+1}, 0xffff
  s_mov_b32 s{sO+2}, 98304
  s_mov_b32 s{sO+3}, 0x20000""")
    addr = f"""  v_and_b32 v20, 31, v0
  v_lshrrev_b32 v21, 5, v0
  v_lshrrev_b32 v22, 2, v20
  v_and_b32 v23, 3, v20
  v_lshlrev_b32 v24, 10, v22
  v_lshl_add_u32 v24, v23, 6, v24
  v_and_b32 v22, 3, v22
  v_xor_b32 v22, v22, v21
  v_lshl_add_u32 v{vKa[0]}, v22, 4, v24
  v_xor_b32 v{vKa[1]}, 32, v{vKa[0]}
  v_add_u32 v{vKb[0]}, 0x10000, v{vKa[0]}
  v_add_u32 v{vKb[1]}, 0x10000, v{vKa[1]}
  v_bfe_u32 v22, v0, 2, 2
  v_lshlrev_b32 v24, 10, v21
  v_lshl_add_u32 v24, v22, 6, v24
  v_bfe_u32 v22, v0, 4, 1
  v_lshl_add_u32 v24, v22, 5, v24
  v_and_b32 v22, 1, v0
  v_lshl_add_u32 v24, v22, 4, v24
  v_bfe_u32 v22, v0, 1, 1
  v_lshl_add_u32 v24, v22, 3, v24
  v_add_u32 v{vVa}, 81920, v24
  v_add_u32 v{vVb}, 98304, v24"""
    k = body.index("  ; ---- first tile ----")
    e("\n".join(body[:k])); e(addr); e("\n".join(body[k:]))
    e(slow_path(NT_O))
    e(f"""L_end:
  s_endpgm
.section .rodata,"a"
.p2align 6
.amdhsa_kernel {KNAME}
  .amdhsa_next_free_vgpr 512
  .amdhsa_next_free_sgpr 102
  .amdhsa_accum_offset 256
  .amdhsa_group_segment_fixed_size 0
  .amdhsa_kernarg_size 48
  .amdhsa_user_sgpr_count 2
  .amdhsa_user_sgpr_kernarg_segment_ptr 1
  .amdhsa_system_sgpr_workgroup_id_x 1
.end_amdhsa_kernel""")
    return "\n".join(out) + "\n"

def slow_path(NT_O):
    o = []; e = o.append
    q, kf, ob, s, p, vt, vf = 32, 64, 96, 160, 192, 200, 232
    vm, vl, vg, vt0 = 14, 11, 20, 18
    e("  s_nop 4")
    e(f"  s_or_b64 s[50:51], {sr(sFlag['A'],2)}, {sr(sFlag['B'],2)}")
    e(f"  s_or_b64 s[50:51], s[50:51], {sr(sFlag['C'],2)}")
    e("  s_cbranch_scc0 L_end")
    e("  s_mov_b32 s56, 0")
    for i, t in enumerate("ABC"):
        e(f"  s_cmp_lg_u64 {sr(sFlag[t],2)}, 0")
        e(f"  s_cselect_b32 s57, {1<<i}, 0")
        e("  s_or_b32 s56, s56, s57")
    e(f"""  v_and_b32 v21, 31, v0
  v_lshrrev_b32 v22, 5, v0
  v_lshlrev_b32 v{vg}, 10, v22
  v_bfe_u32 v23, v21, 4, 1
  v_lshl_add_u32 v{vg}, v23, 5, v{vg}
  v_bfe_u32 v23, v21, 2, 1
  v_lshl_add_u32 v{vg}, v23, 4, v{vg}
  v_bfe_u32 v23, v21, 3, 1
  v_lshl_add_u32 v{vg}, v23, 3, v{vg}
  v_and_b32 v23, 3, v21
  v_lshl_add_u32 v{vg}, v23, 1, v{vg}
  s_mov_b32 s57, 0
  s_mov_b32 s58, s{sQoff['A']}
L_slow_tile:
  s_bitcmp1_b32 s56, s57
  s_cbranch_scc0 L_slow_next
  s_waitcnt vmcnt(0)""")
    for ks in range(8): e(f"  buffer_load_dwordx4 {vr(q+4*ks,4)}, v{vQ}, {sr(sQ,4)}, s58 offen offset:{32*ks}")
    def qk():
        for ks in range(8): e(f"  buffer_load_dwordx4 {vr(kf+4*ks,4)}, v{vQ}, {sr(sK,4)}, s59 offen offset:{32*ks}")
        e("  s_waitcnt vmcnt(0)")
        for ks in range(8):
            e(f"  v_mfma_f32_32x32x16_bf16 {vr(s,16)}, {vr(kf+4*ks,4)}, {vr(q+4*ks,4)}, {vr(s,16) if ks else '0'}")
        e("  s_nop 15")
    e(f"  v_mov_b32 v{vm}, 0xff800000")
    e("  s_mov_b32 s59, 0")
    e("L_slow_max:")
    qk()
    for r in range(0, 16, 2): e(f"  v_max3_f32 v{vm}, v{vm}, v{s+r}, v{s+r+1}")
    e("""  s_add_u32 s59, s59, 8192
  s_cmp_lt_u32 s59, 98304
  s_cbranch_scc1 L_slow_max""")
    e(f"""  v_mov_b32 v{vt0}, v{vm}
  s_nop 1
  v_permlane32_swap_b32 v{vm}, v{vt0}
  v_max_f32 v{vm}, v{vm}, v{vt0}
  v_mov_b32 v{vl}, 0""")
    for r in range(64): e(f"  v_mov_b32 v{ob+r}, 0")
    e("  s_mov_b32 s59, 0")
    e("L_slow_pv:")
    qk()
    for r in range(16): e(f"  v_sub_f32 v{s+r}, v{s+r}, v{vm}")
    for r in range(16): e(f"  v_mul_f32 v{s+r}, s{sC}, v{s+r}")
    for r in range(16): e(f"  v_exp_f32 v{s+r}, v{s+r}")
    e("  s_nop 1")
    for r in range(16): e(f"  v_add_f32 v{vl}, v{vl}, v{s+r}")
    for i in range(8): e(f"  v_cvt_pk_bf16_f32 v{p+i}, v{s+2*i}, v{s+2*i+1}")
    for t in range(2):
        e(f"  s_add_u32 s60, s59, {4096*t}")
        for b in range(4):
            for jj in range(8):
                e(f"  buffer_load_ushort v{vt+8*b+jj}, v{vg}, {sr(sV,4)}, s60 offen offset:{(8*(jj>>2)+(jj&3))*256+64*b}")
        e("  s_waitcnt vmcnt(0)")
        for b in range(4):
            for i in range(4):
                e(f"  v_lshl_or_b32 v{vf+4*b+i}, v{vt+8*b+2*i+1}, 16, v{vt+8*b+2*i}")
        e("  s_nop 1")
        for b in range(4):
            e(f"  v_mfma_f32_32x32x16_bf16 {vr(ob+16*b,16)}, {vr(vf+4*b,4)}, {vr(p+4*t,4)}, {vr(ob+16*b,16)}")
        e("  s_nop 7")
    e("""  s_add_u32 s59, s59, 8192
  s_cmp_lt_u32 s59, 98304
  s_cbranch_scc1 L_slow_pv
  s_nop 15""")
    e(f"""  v_mov_b32 v{vt0}, v{vl}
  s_nop 1
  v_permlane32_swap_b32 v{vl}, v{vt0}
  v_add_f32 v{vl}, v{vl}, v{vt0}
  v_rcp_f32 v{vl}, v{vl}
  s_nop 1""")
    for b in range(4):
        for ss in range(2):
            base = ob + 16 * b + 8 * ss; tmp = q + 8 * b + 4 * ss
            for i in range(8): e(f"  v_mul_f32 v{base+i}, v{vl}, v{base+i}")
            for i in range(4): e(f"  v_cvt_pk_bf16_f32 v{tmp+i}, v{base+2*i}, v{base+2*i+1}")
            e(f"  buffer_store_dwordx4 {vr(tmp,4)}, v{vQ}, {sr(sO,4)}, s58 offen offset:{64*b+32*ss}")
    e("""L_slow_next:
  s_add_u32 s57, s57, 1
  s_add_u32 s58, s58, 32768
  s_cmp_lt_u32 s57, 3
  s_cbranch_scc1 L_slow_tile""")
    return "\n".join(o)

if __name__ == "__main__":
    ap = argparse.ArgumentParser()
    ap.add_argument("-o", default="standalone__gqa_softmax__near_ridge.s")
    ap.add_argument("--la", type=int, default=4)
    ap.add_argument("--qcp", type=int, default=2)
    ap.add_argument("--qcn", type=int, default=2)
    ap.add_argument("--qcd", type=int, default=3)
    ap.add_argument("--stpace", type=int, default=14)
    ap.add_argument("--ntq", type=int, default=0)
    ap.add_argument("--ntkv", type=int, default=0)
    ap.add_argument("--nto", type=int, default=0)
    ap.add_argument("--verbose", type=int, default=1)
    ap.add_argument("--stamp", type=int, default=0)
    opt = ap.parse_args()
    open(opt.o, "w").write(gen(opt))
```

```python
import sys, math, argparse

KNAME = "standalone__gqa_softmax__near_ridge_kernel"
HEADER = """; Kernarg layout for this problem (48 bytes, ptrs only, base s[0:1]):
; @launch grid=(256,1,1) block=(256,1,1) lds=163840
"""

C_SCALE = (128 ** -0.5) * math.log2(math.e)
def f2u(x):
    import struct
    return struct.unpack("<I", struct.pack("<f", x))[0]

vQ, vDK0, vDK1, vDV = 1, 2, 3, 4
vKa = [5, 6]; vKb = [7, 8]; vVa, vVb = 9, 10
vL = {"A": 11, "B": 12, "C": 13}
vM = {"A": 14, "B": 15, "C": 14}
vR = {"A": 16, "B": 17, "C": 16}
vT0, vT1 = 18, 19
vX = 20
vE = [24, 28]
O = {"A": 32, "B": 96, "C": 32}
S = [160, 176]
P = [192, 200]
QC = 208
NEGM = 240
aQ = {"A": 0, "B": 32}
aK, aV, aVres = 64, 96, 128
sQ, sK, sV, sO = 8, 12, 16, 20
sW2048, sC, sMask, sT = 24, 25, 26, 27
sQoff = {"A": 28, "B": 29, "C": 30}
sOff = 32
sFlag = {"A": 44, "B": 46, "C": 48}
sTmp = 50

def vr(b, n): return f"v[{b}:{b+n-1}]"
def ar(b, n): return f"a[{b}:{b+n-1}]"
def sr(b, n): return f"s[{b}:{b+n-1}]"

KSLOT = {j: j for j in range(12)}
VSLOT = {j: 8 + j for j in range(4, 12)}
VSLOT.update({0: 10, 1: 18, 2: 11, 3: 19})
def k_addr(j, ks):
    off = KSLOT[j] * 8192 + 256 * (ks >> 1)
    if off < 65536: return vKa[ks & 1], off
    return vKb[ks & 1], off - 65536
def v_addr(j, t, u, b):
    off = VSLOT[j] * 8192 + t * 4096 + u * 2048 + b * 256
    if VSLOT[j] < 12: return vVa, off - 81920
    return vVb, off - 98304
def v_regs(j): return aVres + 32 * j if j < 4 else aV

class Op:
    __slots__ = ("text", "kind", "cost", "rel", "due", "needs", "tag", "gap", "deps", "trans", "prio", "done")
    def __init__(self, text, kind, cost=1, rel=0, due=10**9, needs=(), tag=None, deps=(), trans=False):
        self.text, self.kind, self.cost, self.rel, self.due = text, kind, cost, rel, due
        self.needs, self.tag, self.gap = list(needs), tag, None
        self.deps, self.trans, self.prio, self.done = list(deps), trans, 0.0, False

def chain(ops, after=()):
    prev = list(after)
    for o in ops:
        o.deps += prev; prev = [o]
    return ops

def gen(opt):
    NT_Q = " nt" if opt.ntq else ""
    NT_KV = " nt" if opt.ntkv else ""
    NT_O = " nt" if opt.nto else ""
    LA = opt.la
    out = []
    e = out.append

    mf = []
    idx = {}
    def qk(t, j, sb):
        idx[("QK", t, j)] = len(mf)
        for ks in range(8):
            bq = ar(aQ[t] + 4 * ks, 4) if t != "C" else vr(QC + 4 * ks, 4)
            c = vr(sb, 16) if ks else (vr(NEGM, 16) if (t == "C" and j > 0) else "0")
            needs = [("K", j, ks)]
            if j == 0 and t != "C": needs.append(("Q", t, ks))
            mf.append(Op(f"v_mfma_f32_32x32x16_bf16 {vr(sb,16)}, {ar(aK+4*ks,4)}, {bq}, {c}", "M", needs=needs))
    def pv(t, j, pb, blockmajor=False):
        idx[("PV", t, j)] = len(mf)
        order = [(tt, b) for tt in range(2) for b in range(4)]
        if blockmajor: order = [(tt, b) for b in range(4) for tt in range(2)]
        for (tt, b) in order:
            f = 4 * tt + b
            d = vr(O[t] + 16 * b, 16)
            c = "0" if (j == 0 and tt == 0) else d
            idx[("PVm", t, j, tt, b)] = len(mf)
            mf.append(Op(f"v_mfma_f32_32x32x16_bf16 {d}, {ar(v_regs(j)+4*f,4)}, {vr(pb+4*tt,4)}, {c}", "M",
                         needs=[("V", j, f)] if not (t == "C" and j < 4) else []))
    for j in range(12):
        qk("A", j, S[0])
        if j > 0: pv("B", j - 1, P[1])
        qk("B", j, S[1])
        pv("A", j, P[0])
    qk("C", 0, S[0]); pv("B", 11, P[1])
    for j in range(12):
        if j < 11: qk("C", j + 1, S[(j + 1) & 1])
        pv("C", j, P[j & 1], blockmajor=(j == 11))
    NM = len(mf)
    assert NM == 576

    fixed = [[] for _ in range(NM)]
    first = [[] for _ in range(NM)]
    cap = [6] * NM
    streams = []

    def pin(g, op): fixed[g].append(op)

    def dma_pair(kind, j):
        slot = KSLOT[j] if kind == "K" else VSLOT[j]
        srd = sK if kind == "K" else sV
        va = (vDK0, vDK1) if kind == "K" else (vDV, vDV)
        m0 = Op(f"s_add_u32 m0, s{sW2048}, {slot*8192}", "S")
        d = [Op(f"buffer_load_dwordx4 v{va[i]}, {sr(srd,4)}, s{sOff+j} offen offset:{1024*i}{NT_KV} lds", "G", 2,
                tag=("D" + kind, j, i)) for i in range(2)]
        return m0, d
    def q_load(t, ks):
        dst = ar(aQ[t] + 4 * ks, 4) if t != "C" else vr(QC + 4 * ks, 4)
        return Op(f"buffer_load_dwordx4 {dst}, v{vQ}, {sr(sQ,4)}, s{sQoff[t]} offen offset:{32*ks}{NT_Q}", "G", 2, tag=("Q", t, ks))
    def k_read(j, ks):
        a, off = k_addr(j, ks)
        return Op(f"ds_read_b128 {ar(aK+4*ks,4)}, v{a} offset:{off}", "L", 1, tag=("K", j, ks))
    def v_read(j, f, u):
        tt, b = f >> 2, f & 3
        a, off = v_addr(j, tt, u, b)
        return Op(f"ds_read_b64_tr_b16 {ar(v_regs(j)+4*f+2*u,2)}, v{a} offset:{off}", "L", 1,
                  tag=("V", j, f) if u else ("Vh", j, f))

    lastl = {}
    def softmax(t, j, sb, pb, rel, due0, due1, mode, after=()):
        ops = []
        pre, ex = {}, {}
        def mkpre(r):
            if mode == "fma": o = Op(f"v_fma_f32 v{sb+r}, v{sb+r}, s{sC}, v{vM[t]}", "V", deps=after)
            elif mode == "add": o = Op(f"v_add_f32 v{sb+r}, v{vM[t]}, v{sb+r}", "V", deps=after)
            else: return []
            pre[r] = o
            return [o]
        ops += mkpre(0) + mkpre(1)
        for i in range(8):
            r = 2 * i
            for x in (r, r + 1):
                ex[x] = Op(f"v_exp_f32 v{sb+x}, v{sb+x}", "V", 2, deps=[pre[x]] if x in pre else after, trans=True)
                ops.append(ex[x])
            if i < 7: ops += mkpre(r + 2) + mkpre(r + 3)
            for x in (r, r + 1):
                txt = f"v_mov_b32 v{vL[t]}, v{sb}" if (j == 0 and x == 0) else f"v_add_f32 v{vL[t]}, v{vL[t]}, v{sb+x}"
                a = Op(txt, "V", deps=[ex[x]] + ([lastl[t]] if t in lastl else []), due=due1)
                lastl[t] = a; ops.append(a)
            ops.append(Op(f"v_cvt_pk_bf16_f32 v{pb+i}, v{sb+r}, v{sb+r+1}", "V", deps=[ex[r], ex[r + 1]],
                          due=due0 if i < 4 else due1))
        for o in ops: o.rel = rel
        return ops
    def rowmax(t, sb, rel):
        m = vM[t]
        ops = [Op(f"v_max3_f32 v{m}, v{sb}, v{sb+1}, v{sb+2}", "V")]
        for r in range(3, 15, 2):
            ops.append(Op(f"v_max3_f32 v{m}, v{m}, v{sb+r}, v{sb+r+1}", "V"))
        ops.append(Op(f"v_max_f32 v{m}, v{m}, v{sb+15}", "V"))
        ops.append(Op(f"v_mov_b32 v{vT0}, v{m}", "V"))
        ops.append(Op("s_nop 1", "V", 2))
        ops.append(Op(f"v_permlane32_swap_b32 v{m}, v{vT0}", "V"))
        ops.append(Op(f"v_max_f32 v{m}, v{m}, v{vT0}", "V"))
        if t == "C": ops.append(Op(f"v_sub_f32 v{m}, 0, v{m}", "V"))
        else: ops.append(Op(f"v_mul_f32 v{m}, s{sC}, v{m}", "V")); ops.append(Op(f"v_sub_f32 v{m}, 0, v{m}", "V"))
        for o in ops: o.rel = rel
        return chain(ops)
    ecnt = [0]
    def epilogue(t, rel_l, rel_blk, due_blk):
        l, r = vL[t], vR[t]
        ops = [Op(f"v_mov_b32 v{vT1}, v{l}", "V"), Op("s_nop 1", "V", 2),
               Op(f"v_permlane32_swap_b32 v{l}, v{vT1}", "V"),
               Op(f"v_add_f32 v{l}, v{l}, v{vT1}", "V"),
               Op(f"v_rcp_f32 v{r}, v{l}", "V", 2, trans=True),
               Op(f"v_cmp_nle_f32_e64 {sr(sFlag[t],2)}, v{l}, s{sT}", "V")]
        for o in ops: o.rel = rel_l
        ops[0].deps.append(lastl[t])
        for b in range(4):
            for s in range(2):
                tmp = vE[ecnt[0] & 1]; ecnt[0] += 1
                base = O[t] + 16 * b + 8 * s
                blk = []
                for i in range(4):
                    blk.append(Op(f"v_mul_f32 v{base+2*i}, v{r}, v{base+2*i}", "V"))
                    blk.append(Op(f"v_mul_f32 v{base+2*i+1}, v{r}, v{base+2*i+1}", "V"))
                    blk.append(Op(f"v_cvt_pk_bf16_f32 v{tmp+i}, v{base+2*i}, v{base+2*i+1}", "V"))
                for o in blk: o.rel = rel_blk[b]; o.due = due_blk[b]
                st = Op(f"buffer_store_dwordx4 {vr(tmp,4)}, v{vQ}, {sr(sO,4)}, s{sQoff[t]} offen offset:{64*b+32*s}{NT_O}", "ST", 2,
                        tag=("ST", t, b, s))
                st.rel = rel_blk[b]; st.due = due_blk[b]
                ops += blk + [st]
        return ops
    def prescale(rel, due):
        ops = []
        for i in range(32):
            r = QC + i
            blk = [Op(f"v_lshlrev_b32 v{vX}, 16, v{r}", "V", needs=[("Q", "C", i >> 2)]),
                   Op(f"v_and_b32 v{r}, s{sMask}, v{r}", "V"),
                   Op(f"v_mul_f32 v{vX}, s{sC}, v{vX}", "V"),
                   Op(f"v_mul_f32 v{r}, s{sC}, v{r}", "V"),
                   Op(f"v_cvt_pk_bf16_f32 v{r}, v{vX}, v{r}", "V")]
            for o in blk: o.rel = rel[i >> 2]; o.due = due
            ops += blk
        return ops

    pro = []
    pro += [q_load("A", ks) for ks in range(8)]
    m0, d = dma_pair("K", 0); pro += [m0, Op("s_nop 0", "S")] + d
    pro += [q_load("B", ks) for ks in range(8)]
    for g in range(LA):
        for kind, j in (("V", g), ("K", g + 1)):
            m0, d = dma_pair(kind, j); pro += [m0, Op("s_nop 0", "S")] + d

    qc_issued = {}
    for j in range(12):
        a0 = idx[("QK", "A", j)]; b0 = idx[("QK", "B", j)]; pa = idx[("PV", "A", j)]
        bar = a0 + 7
        need = [("DV", j, 1)] + ([("DK", j + 1, 1)] if j < 11 else [])
        first[bar].append(Op("", "W", needs=need))
        pin(bar, Op("s_barrier", "B", 0)); cap[bar] = 2
        if j + LA <= 11:
            m0, d = dma_pair("V", j + LA); first[a0].append(m0); pin(a0 + 1, d[0]); pin(a0 + 2, d[1])
        if j + LA + 1 <= 11:
            m0, d = dma_pair("K", j + LA + 1); first[a0 + 3].append(m0); pin(a0 + 4, d[0]); pin(a0 + 5, d[1])
        if opt.qcp <= j < opt.qcp + 8 // opt.qcn:
            for i in range(opt.qcn):
                ks = (j - opt.qcp) * opt.qcn + i
                g = a0 + (6, 3, 0, 6)[i % 4]
                pin(g, q_load("C", ks)); qc_issued[ks] = j
        if j > 0:
            for f in range(8):
                for u in range(2): pin(a0 + 8 + 2 * f + u, v_read(j, f, u))
        else:
            for f in range(8):
                for u in range(2): pin(b0 + min(f, 4), v_read(j, f, u))
        for ks in range(8): pin(pa + ks, k_read((j + 1) % 12, ks))
        sa = []
        if j == 0: sa += rowmax("A", S[0], a0 + 9)
        sa += softmax("A", j, S[0], P[0], a0 + 9, pa - 2, pa + 2, "fma", after=sa[-1:])
        streams.append(sa)
        pbn = idx[("PV", "B", j)]
        sb_ = []
        if j == 0: sb_ += rowmax("B", S[1], b0 + 9)
        sb_ += softmax("B", j, S[1], P[1], b0 + 9, pbn - 2, pbn + 2, "fma", after=sb_[-1:])
        streams.append(sb_)
    c0 = idx[("QK", "C", 0)]
    rel = [idx[("QK", "A", min(11, qc_issued[k] + opt.qcd))] + 8 for k in range(8)]
    lowprio = [chain(prescale(rel, c0 - 2))]

    for j in range(12):
        q0 = idx[("QK", "C", j)]; p0 = idx[("PV", "C", j)]
        if j < 11:
            for ks in range(8): pin(q0 + ks, k_read(j + 1, ks))
        if 4 <= j + 1 <= 11:
            for f in range(8):
                for u in range(2): pin(p0 + f, v_read(j + 1, f, u))
        st = []; aft = []
        if j == 0:
            st += rowmax("C", S[0], q0 + 9); aft = st[-1:]
            st += [Op(f"v_mov_b32 v{NEGM+i}, v{vM['C']}", "V", rel=q0 + 9, due=idx[("QK", "C", 1)] - 2, deps=aft) for i in range(16)]
        d1 = p0 + 2 if j < 11 else p0 - 1
        st += softmax("C", j, S[j & 1], P[j & 1], q0 + 9, p0 - 2, d1, "add" if j == 0 else "raw", after=aft)
        streams.append(st)
    paA = idx[("PV", "A", 11)]; paB = idx[("PV", "B", 11)]; pc0 = idx[("PV", "C", 0)]; pcl = idx[("PV", "C", 11)]
    epiA = epilogue("A", paA + 3, [idx[("PVm", "A", 11, 1, b)] + 2 for b in range(4)], [pc0 + b - 1 for b in range(4)])
    epiB = epilogue("B", paB + 3, [idx[("PVm", "B", 11, 1, b)] + 2 for b in range(4)], [pcl - 9] * 4)
    epiC = epilogue("C", pcl, [idx[("PVm", "C", 11, 1, b)] + 2 for b in range(4)], [10**9] * 4)
    nst = 0
    for o in epiB:
        if o.kind == "ST":
            o.rel = max(o.rel, pc0 + 8 + opt.stpace * nst); nst += 1
    lowprio.append(chain(epiA + epiB + epiC))

    allops = [o for st in streams + lowprio for o in st]
    for o in reversed(allops):
        for d in o.deps: d.due = min(d.due, o.due)
    for k, st in enumerate(streams):
        for n, o in enumerate(st): o.prio = k * 1000 + n
    for k, st in enumerate(lowprio):
        for n, o in enumerate(st): o.prio = 10**6 + k * 10000 + n

    sched = [[] for _ in range(NM)]
    load = [0] * NM
    pending = sorted(allops, key=lambda o: o.prio)
    for g in range(NM):
        used = sum(o.cost for o in fixed[g]) + max(0, len(first[g]) - 1)
        stores, valu = [], []
        cand = [o for o in pending if o.rel <= g]
        for o in cand:
            if o.kind == "ST" and all(d.done for d in o.deps) and (used + 2 <= cap[g] or o.due <= g):
                stores.append(o); o.done = True; o.gap = g; used += 2
        while True:
            best = None
            for o in cand:
                if o.done or not all(d.done for d in o.deps): continue
                forced = o.due <= g
                if o.kind == "ST" and not forced: continue
                if not forced and used + o.cost > cap[g]: continue
                hazard = bool(valu) and valu[-1].trans and valu[-1] in o.deps and not o.trans
                if hazard and not forced: continue
                key = (0 if forced else 1, hazard, o.prio)
                if best is None or key < best[0]: best = (key, o)
            if best is None: break
            key, o = best
            if key[1]: valu.append(Op("s_nop 0", "V")); used += 1
            valu.append(o); o.done = True; o.gap = g; used += o.cost + (1 if o.kind == "ST" else 0)
        pending = [o for o in pending if not o.done]
        sched[g] = list(fixed[g]) + stores + valu
        load[g] = used
    tail = []
    for o in pending:
        if tail and tail[-1].trans: tail.append(Op("s_nop 0", "V"))
        tail.append(o)

    lg_seq = {}; vm_seq = {}; nlg = [0]; nvm = [0]; lg_gap = []
    lg_done = [0]; vm_done = [0]
    body = []
    def issue(o, g):
        if o.kind == "L":
            nlg[0] += 1; lg_seq[o.tag] = nlg[0]; lg_gap.append(g)
        elif o.kind in ("G", "ST"):
            nvm[0] += 1; vm_seq[o.tag] = nvm[0]
        body.append("  " + o.text)
    def wait_for(needs, g, extend):
        lg = max([lg_seq[n] for n in needs if n in lg_seq] + [0])
        vm = max([vm_seq[n] for n in needs if n in vm_seq] + [0])
        for n in needs:
            assert n in lg_seq or n in vm_seq, (n, g)
        parts = []
        if vm > vm_done[0]:
            parts.append(f"vmcnt({nvm[0]-vm})"); vm_done[0] = vm
            assert nvm[0] - vm <= 63
        if lg > lg_done[0]:
            if extend:
                k = lg
                while k < nlg[0] and lg_gap[k] <= g - 3: k += 1
                lg = k
            parts.append(f"lgkmcnt({min(15, nlg[0]-lg)})"); lg_done[0] = lg
        if parts: body.append("  s_waitcnt " + " ".join(parts))
        return bool(parts)
    nstamp = [1]
    def stamp():
        if not opt.stamp: return
        k = nstamp[0]; nstamp[0] += 1
        if opt.enc and k not in opt.enc[:2]: return
        body.append(f"  {'s_memtime' if opt.stamp == 2 else 's_memrealtime'} s[{64+2*k}:{65+2*k}]")
        body.append("  s_waitcnt lgkmcnt(0)"); lg_done[0] = nlg[0]
    stamp_at = set()
    if opt.stamp:
        stamp_at = {idx[("QK", "A", j)] for j in (1, 2, 3, 4, 6, 8, 10)} | {idx[("QK", "C", j)] for j in (0, 1, 4, 8)}
    if opt.probe is not None:
        fl = opt.probe.replace("+", " ").replace("def", "")
        body.append("  v_lshlrev_b32 v30, 4, v0\n  s_lshl_b32 s57, s31, 10\n  s_memrealtime s[98:99]")
        n = 0
        for i in range(12):
            for srd, c in ((sQ, 2*i), (sQ, 2*i+1), (sK, 2*i), (sK, 2*i+1), (sV, 2*i), (sV, 2*i+1)):
                body.append(f"  s_add_u32 m0, s57, {(n % 36) * 4096}\n  s_add_u32 s58, s57, {c*4096}")
                body.append(f"  buffer_load_dwordx4 v30, {sr(srd,4)}, s58 offen {fl} lds")
                n += 1
                if n >= 12: body.append("  s_waitcnt vmcnt(11)")
        body.append("  s_waitcnt vmcnt(0)\n  s_memrealtime s[100:101]\n  s_waitcnt lgkmcnt(0)\n  s_barrier")
    for o in pro: issue(o, -10)
    if opt.wb:
        if opt.wb[0] == 1: body.append("  s_mov_b32 s59, s31")
        if opt.wb[0] == 2: body.append("  s_lshr_b32 s59, s2, 3\n  s_xor_b32 s59, s59, 5\n  s_or_b32 s59, s59, s31")
    stamp()
    body.append("  ; ---- first tile ----")
    wait_for([("DK", 0, 1)], -10, False)
    body.append("  s_barrier")
    stamp()
    for ks in range(8): issue(k_read(0, ks), -10)
    extra = 0
    for g in range(NM):
        late = [n for n in mf[g].needs if not ((n in lg_seq and lg_seq[n] <= lg_done[0]) or (n in vm_seq and vm_seq[n] <= vm_done[0]))]
        if late: wait_for(late, g, True)
        if g in stamp_at: stamp()
        body.append("  " + mf[g].text)
        needs = []
        for o in first[g]:
            if o.kind == "W": needs += o.needs
        for o in sched[g]: needs += o.needs
        if g + 1 < NM:
            needs += [n for n in mf[g + 1].needs if n in lg_seq or n in vm_seq]
        look = g + 2
        while look < NM and any(o.kind == "S" for o in first[look - 1]):
            needs += [n for n in mf[look].needs if n in lg_seq and lg_gap[lg_seq[n] - 1] <= g - 3]
            look += 1
        w = wait_for(needs, g, True)
        sc = [o for o in first[g] if o.kind == "S"]
        if w and sc: extra += 1
        for o in sc: issue(o, g)
        if opt.wb and (g - pc0) in opt.wb[1:]:
            if opt.wb[0]: body.append(f"  s_cmp_eq_u32 s59, 0\n  s_cbranch_scc0 L_wb{g}")
            body.append(f"  buffer_wbl2 sc1\nL_wb{g}:")
            nvm[0] += 1
        for o in sched[g]: issue(o, g)
    body.append("  ; ---- tail ----")
    body.append("  s_nop 7"); body.append("  s_nop 3")
    stamp()
    for o in tail: issue(o, NM)
    stamp()
    if opt.stamp:
        body.append("  s_waitcnt vmcnt(0)")
        stamp()
        n = nstamp[0]
    if opt.stamp and opt.enc:
        a, b, K, wg = opt.enc
        body.append(f"  s_sub_u32 s57, s{64+2*b}, s{64+2*a}\n  s_mul_i32 s57, s57, {K}")
        if opt.encg:
            body.append(f"""  s_load_dwordx2 s[60:61], s[0:1], 32
  s_waitcnt lgkmcnt(0)
  s_and_b32 s61, s61, 0xffff
  s_mov_b32 s62, 256
  s_mov_b32 s63, 0x20000
  s_mov_b64 s[58:59], exec
  s_mov_b64 exec, 1
  s_not_b32 s57, s{64+2*a}
  v_mov_b32 v20, s57
  v_mov_b32 v21, 0
  v_mov_b32 v22, s{64+2*b}
  v_mov_b32 v23, 1
  buffer_atomic_umax v20, v21, s[60:63], 0 offen sc1
  buffer_atomic_umax v22, v21, s[60:63], 0 offen offset:64 sc1
  s_waitcnt vmcnt(0)
  buffer_atomic_add v23, v21, s[60:63], 0 offen offset:128 sc1
  s_waitcnt vmcnt(0)
  s_mov_b32 s57, 0
  s_cmp_eq_u32 s2, {wg}
  s_cbranch_scc0 L_nopoll
  s_mov_b32 s56, 0
L_poll:
  buffer_load_dword v23, v21, s[60:63], 0 offen offset:128 sc1
  s_waitcnt vmcnt(0)
  v_readfirstlane_b32 s57, v23
  s_add_u32 s56, s56, 1
  s_cmp_gt_u32 s56, 2000
  s_cbranch_scc1 L_pollend
  s_cmp_lt_u32 s57, 1024
  s_cbranch_scc1 L_poll
L_pollend:
  buffer_load_dword v20, v21, s[60:63], 0 offen sc1
  buffer_load_dword v22, v21, s[60:63], 0 offen offset:64 sc1
  s_waitcnt vmcnt(0)
  v_not_b32 v20, v20
  v_sub_u32 v22, v22, v20
  s_nop 1
  v_readfirstlane_b32 s57, v22
  s_min_u32 s57, s57, 10000
  s_mul_i32 s57, s57, {K}
L_nopoll:
  s_mov_b64 exec, s[58:59]""")
        if opt.encw:
            body.append(f"""  s_mov_b32 s57, 0
  s_lshr_b32 s56, s2, 3
  s_cmp_eq_u32 s56, 12
  s_cbranch_scc0 L_now
  s_cmp_eq_u32 s31, 0
  s_cbranch_scc0 L_now
L_w0:
  s_memrealtime s[62:63]
  s_waitcnt lgkmcnt(0)
  s_sub_u32 s56, s62, s{64+2*b}
  s_cmp_lt_u32 s56, {opt.encw}
  s_cbranch_scc1 L_w0
  buffer_wbl2 sc1
  s_waitcnt vmcnt(0)
  s_memrealtime s[60:61]
  s_waitcnt lgkmcnt(0)
  s_sub_u32 s57, s60, s62
  s_mul_i32 s57, s57, {K}
L_now:""")
        if opt.stamp == 2: body.append("  s_lshr_b32 s57, s57, 6")
        if wg >= 0: body.append(f"  s_cmp_eq_u32 s2, {wg}\n  s_cselect_b32 s57, s57, 0")
        body.append("  s_memrealtime s[60:61]\n  s_waitcnt lgkmcnt(0)\nL_spin:\n  s_memrealtime s[62:63]\n  s_waitcnt lgkmcnt(0)")
        body.append("  s_sub_u32 s62, s62, s60\n  s_cmp_lt_u32 s62, s57\n  s_cbranch_scc1 L_spin")
    elif opt.stamp:
        body.append("  s_load_dwordx2 s[60:61], s[0:1], 40")
        body.append("  s_waitcnt lgkmcnt(0)")
        body.append("  s_and_b32 s61, s61, 0xffff\n  s_mov_b32 s62, 0x1000000\n  s_mov_b32 s63, 0x20000")
        body.append("  s_lshl_b32 s57, s2, 2\n  s_add_u32 s57, s57, s31\n  s_lshl_b32 s57, s57, 7")
        body.append("  v_mov_b32 v21, 0")
        for k in range(n):
            body.append(f"  v_mov_b32 v20, s{64+2*k}")
            body.append(f"  buffer_store_dword v20, v21, s[60:63], s57 offen offset:{4*k}")
        body.append("  s_waitcnt vmcnt(0)")
    if opt.verbose:
        over = sum(max(0, load[g] - cap[g]) for g in range(NM))
        print(f"; overflow slots {over}, extra scalar {extra}, tail ops {len(tail)}", file=sys.stderr)
        for g0 in range(0, NM, 32):
            print(g0, " ".join(str(load[g]) for g in range(g0, min(NM, g0 + 32))), file=sys.stderr)

    e(HEADER.rstrip("\n"))
    e(f""".amdgcn_target "amdgcn-amd-amdhsa--gfx950"
.text
.globl {KNAME}
.p2align 8
.type {KNAME},@function
{KNAME}:
  s_cmp_ge_u32 s2, 256
  s_cbranch_scc1 L_end
{"  s_memrealtime s[64:65]" if opt.stamp == 1 else "  s_memtime s[64:65]" if opt.stamp == 2 else ""}
  s_load_dwordx4 s[4:7], s[0:1], 0
  s_load_dwordx4 s[52:55], s[0:1], 16
  v_lshrrev_b32 v1, 6, v0
  v_and_b32 v0, 63, v0
  s_and_b32 s3, s2, 7
  v_readfirstlane_b32 s31, v1
  s_lshr_b32 s50, s2, 4
  s_lshl_b32 s50, s50, 3
  s_add_u32 s3, s3, s50
  s_lshr_b32 s50, s2, 3
  s_and_b32 s50, s50, 1
  s_lshl_b32 s51, s3, 1
  s_add_u32 s51, s51, s50
  s_mul_i32 s3, s3, 98304
  s_mul_i32 s51, s51, 98304
  s_lshl_b32 s{sW2048}, s31, 11
  s_lshl_b32 s{sQoff['A']}, s31, 13
  s_add_u32 s{sQoff['B']}, s{sQoff['A']}, 32768
  s_add_u32 s{sQoff['C']}, s{sQoff['A']}, 65536
  s_mov_b32 s{sC}, {f2u(C_SCALE):#x}
  s_mov_b32 s{sMask}, 0xffff0000
  s_mov_b32 s{sT}, {f2u(2.0**30):#x}""")
    for j in range(12): e(f"  s_mov_b32 s{sOff+j}, {8192*j}")
    e(f"""  v_and_b32 v20, 31, v0
  v_lshrrev_b32 v21, 5, v0
  v_lshlrev_b32 v{vQ}, 8, v20
  v_lshl_add_u32 v{vQ}, v21, 4, v{vQ}
  v_and_b32 v22, 3, v0
  v_bfe_u32 v23, v0, 2, 2
  v_lshrrev_b32 v24, 4, v0
  v_lshlrev_b32 v{vDV}, 8, v23
  v_lshl_add_u32 v{vDV}, v24, 6, v{vDV}
  v_add_u32 v{vDV}, s{sW2048}, v{vDV}
  s_lshl_b32 s50, s31, 1
  s_and_b32 s50, s50, 3
  v_xor_b32 v25, s50, v22
  v_lshl_add_u32 v{vDK0}, v25, 4, v{vDV}
  v_xor_b32 v{vDK1}, 16, v{vDK0}
  v_lshl_add_u32 v{vDV}, v22, 4, v{vDV}
  s_waitcnt lgkmcnt(0)
  s_add_u32 s{sQ}, s4, s51
  s_addc_u32 s{sQ+1}, s5, 0
  s_and_b32 s{sQ+1}, s{sQ+1}, 0xffff
  s_mov_b32 s{sQ+2}, 98304
  s_mov_b32 s{sQ+3}, 0x20000
  s_add_u32 s{sK}, s6, s3
  s_addc_u32 s{sK+1}, s7, 0
  s_and_b32 s{sK+1}, s{sK+1}, 0xffff
  s_mov_b32 s{sK+2}, 98304
  s_mov_b32 s{sK+3}, 0x20000
  s_add_u32 s{sV}, s52, s3
  s_addc_u32 s{sV+1}, s53, 0
  s_and_b32 s{sV+1}, s{sV+1}, 0xffff
  s_mov_b32 s{sV+2}, 98304
  s_mov_b32 s{sV+3}, 0x20000
  s_add_u32 s{sO}, s54, s51
  s_addc_u32 s{sO+1}, s55, 0
  s_and_b32 s{sO+1}, s{sO+1}, 0xffff
  s_mov_b32 s{sO+2}, 98304
  s_mov_b32 s{sO+3}, 0x20000""")
    addr = f"""  v_and_b32 v20, 31, v0
  v_lshrrev_b32 v21, 5, v0
  v_lshrrev_b32 v22, 2, v20
  v_and_b32 v23, 3, v20
  v_lshlrev_b32 v24, 10, v22
  v_lshl_add_u32 v24, v23, 6, v24
  v_and_b32 v22, 3, v22
  v_xor_b32 v22, v22, v21
  v_lshl_add_u32 v{vKa[0]}, v22, 4, v24
  v_xor_b32 v{vKa[1]}, 32, v{vKa[0]}
  v_add_u32 v{vKb[0]}, 0x10000, v{vKa[0]}
  v_add_u32 v{vKb[1]}, 0x10000, v{vKa[1]}
  v_bfe_u32 v22, v0, 2, 2
  v_lshlrev_b32 v24, 10, v21
  v_lshl_add_u32 v24, v22, 6, v24
  v_bfe_u32 v22, v0, 4, 1
  v_lshl_add_u32 v24, v22, 5, v24
  v_and_b32 v22, 1, v0
  v_lshl_add_u32 v24, v22, 4, v24
  v_bfe_u32 v22, v0, 1, 1
  v_lshl_add_u32 v24, v22, 3, v24
  v_add_u32 v{vVa}, 81920, v24
  v_add_u32 v{vVb}, 98304, v24"""
    k = body.index("  ; ---- first tile ----")
    e("\n".join(body[:k])); e(addr); e("\n".join(body[k:]))
    e(slow_path(NT_O))
    e(f"""L_end:
  s_endpgm
.section .rodata,"a"
.p2align 6
.amdhsa_kernel {KNAME}
  .amdhsa_next_free_vgpr 512
  .amdhsa_next_free_sgpr 102
  .amdhsa_accum_offset 256
  .amdhsa_group_segment_fixed_size 0
  .amdhsa_kernarg_size 48
  .amdhsa_user_sgpr_count 2
  .amdhsa_user_sgpr_kernarg_segment_ptr 1
  .amdhsa_system_sgpr_workgroup_id_x 1
.end_amdhsa_kernel""")
    return "\n".join(out) + "\n"

def slow_path(NT_O):
    o = []; e = o.append
    q, kf, ob, s, p, vt, vf = 32, 64, 96, 160, 192, 200, 232
    vm, vl, vg, vt0 = 14, 11, 20, 18
    e("  s_nop 4")
    e(f"  s_or_b64 s[50:51], {sr(sFlag['A'],2)}, {sr(sFlag['B'],2)}")
    e(f"  s_or_b64 s[50:51], s[50:51], {sr(sFlag['C'],2)}")
    e("  s_cbranch_scc0 L_end")
    e("  s_mov_b32 s56, 0")
    for i, t in enumerate("ABC"):
        e(f"  s_cmp_lg_u64 {sr(sFlag[t],2)}, 0")
        e(f"  s_cselect_b32 s57, {1<<i}, 0")
        e("  s_or_b32 s56, s56, s57")
    e(f"""  v_and_b32 v21, 31, v0
  v_lshrrev_b32 v22, 5, v0
  v_lshlrev_b32 v{vg}, 10, v22
  v_bfe_u32 v23, v21, 4, 1
  v_lshl_add_u32 v{vg}, v23, 5, v{vg}
  v_bfe_u32 v23, v21, 2, 1
  v_lshl_add_u32 v{vg}, v23, 4, v{vg}
  v_bfe_u32 v23, v21, 3, 1
  v_lshl_add_u32 v{vg}, v23, 3, v{vg}
  v_and_b32 v23, 3, v21
  v_lshl_add_u32 v{vg}, v23, 1, v{vg}
  s_mov_b32 s57, 0
  s_mov_b32 s58, s{sQoff['A']}
L_slow_tile:
  s_bitcmp1_b32 s56, s57
  s_cbranch_scc0 L_slow_next
  s_waitcnt vmcnt(0)""")
    for ks in range(8): e(f"  buffer_load_dwordx4 {vr(q+4*ks,4)}, v{vQ}, {sr(sQ,4)}, s58 offen offset:{32*ks}")
    def qk():
        for ks in range(8): e(f"  buffer_load_dwordx4 {vr(kf+4*ks,4)}, v{vQ}, {sr(sK,4)}, s59 offen offset:{32*ks}")
        e("  s_waitcnt vmcnt(0)")
        for ks in range(8):
            e(f"  v_mfma_f32_32x32x16_bf16 {vr(s,16)}, {vr(kf+4*ks,4)}, {vr(q+4*ks,4)}, {vr(s,16) if ks else '0'}")
        e("  s_nop 15")
    e(f"  v_mov_b32 v{vm}, 0xff800000")
    e("  s_mov_b32 s59, 0")
    e("L_slow_max:")
    qk()
    for r in range(0, 16, 2): e(f"  v_max3_f32 v{vm}, v{vm}, v{s+r}, v{s+r+1}")
    e("""  s_add_u32 s59, s59, 8192
  s_cmp_lt_u32 s59, 98304
  s_cbranch_scc1 L_slow_max""")
    e(f"""  v_mov_b32 v{vt0}, v{vm}
  s_nop 1
  v_permlane32_swap_b32 v{vm}, v{vt0}
  v_max_f32 v{vm}, v{vm}, v{vt0}
  v_mov_b32 v{vl}, 0""")
    for r in range(64): e(f"  v_mov_b32 v{ob+r}, 0")
    e("  s_mov_b32 s59, 0")
    e("L_slow_pv:")
    qk()
    for r in range(16): e(f"  v_sub_f32 v{s+r}, v{s+r}, v{vm}")
    for r in range(16): e(f"  v_mul_f32 v{s+r}, s{sC}, v{s+r}")
    for r in range(16): e(f"  v_exp_f32 v{s+r}, v{s+r}")
    e("  s_nop 1")
    for r in range(16): e(f"  v_add_f32 v{vl}, v{vl}, v{s+r}")
    for i in range(8): e(f"  v_cvt_pk_bf16_f32 v{p+i}, v{s+2*i}, v{s+2*i+1}")
    for t in range(2):
        e(f"  s_add_u32 s60, s59, {4096*t}")
        for b in range(4):
            for jj in range(8):
                e(f"  buffer_load_ushort v{vt+8*b+jj}, v{vg}, {sr(sV,4)}, s60 offen offset:{(8*(jj>>2)+(jj&3))*256+64*b}")
        e("  s_waitcnt vmcnt(0)")
        for b in range(4):
            for i in range(4):
                e(f"  v_lshl_or_b32 v{vf+4*b+i}, v{vt+8*b+2*i+1}, 16, v{vt+8*b+2*i}")
        e("  s_nop 1")
        for b in range(4):
            e(f"  v_mfma_f32_32x32x16_bf16 {vr(ob+16*b,16)}, {vr(vf+4*b,4)}, {vr(p+4*t,4)}, {vr(ob+16*b,16)}")
        e("  s_nop 7")
    e("""  s_add_u32 s59, s59, 8192
  s_cmp_lt_u32 s59, 98304
  s_cbranch_scc1 L_slow_pv
  s_nop 15""")
    e(f"""  v_mov_b32 v{vt0}, v{vl}
  s_nop 1
  v_permlane32_swap_b32 v{vl}, v{vt0}
  v_add_f32 v{vl}, v{vl}, v{vt0}
  v_rcp_f32 v{vl}, v{vl}
  s_nop 1""")
    for b in range(4):
        for ss in range(2):
            base = ob + 16 * b + 8 * ss; tmp = q + 8 * b + 4 * ss
            for i in range(8): e(f"  v_mul_f32 v{base+i}, v{vl}, v{base+i}")
            for i in range(4): e(f"  v_cvt_pk_bf16_f32 v{tmp+i}, v{base+2*i}, v{base+2*i+1}")
            e(f"  buffer_store_dwordx4 {vr(tmp,4)}, v{vQ}, {sr(sO,4)}, s58 offen offset:{64*b+32*ss}")
    e("""L_slow_next:
  s_add_u32 s57, s57, 1
  s_add_u32 s58, s58, 32768
  s_cmp_lt_u32 s57, 3
  s_cbranch_scc1 L_slow_tile""")
    return "\n".join(o)

if __name__ == "__main__":
    ap = argparse.ArgumentParser()
    ap.add_argument("-o", default="standalone__gqa_softmax__near_ridge.s")
    ap.add_argument("--la", type=int, default=4)
    ap.add_argument("--qcp", type=int, default=2)
    ap.add_argument("--qcn", type=int, default=2)
    ap.add_argument("--qcd", type=int, default=3)
    ap.add_argument("--stpace", type=int, default=14)
    ap.add_argument("--ntq", type=int, default=0)
    ap.add_argument("--ntkv", type=int, default=0)
    ap.add_argument("--nto", type=int, default=0)
    ap.add_argument("--verbose", type=int, default=1)
    ap.add_argument("--stamp", type=int, default=0)
    ap.add_argument("--enc", type=lambda x: [int(y) for y in x.split(",")], default=None)
    ap.add_argument("--encg", type=int, default=0)
    ap.add_argument("--encw", type=int, default=0)
    ap.add_argument("--probe", default=None)
    ap.add_argument("--wb", type=lambda x: [int(y) for y in x.split(",")], default=None)
    opt = ap.parse_args()
    open(opt.o, "w").write(gen(opt))
```

```python
import sys, math, argparse

KNAME = "standalone__gqa_softmax__near_ridge_kernel"
HEADER = """; Kernarg layout for this problem (48 bytes, ptrs only, base s[0:1]):
; @launch grid=(256,1,1) block=(256,1,1) lds=163840
"""

C_SCALE = (128 ** -0.5) * math.log2(math.e)
def f2u(x):
    import struct
    return struct.unpack("<I", struct.pack("<f", x))[0]

vQ, vDK0, vDK1, vDV = 1, 2, 3, 4
vKa = [5, 6]; vKb = [7, 8]; vVa, vVb = 9, 10
vL = {"A": 11, "B": 12, "C": 13}
vM = {"A": 14, "B": 15, "C": 14}
vR = {"A": 16, "B": 17, "C": 16}
vT0, vT1 = 18, 19
vX = 20
vE = [24, 28]
O = {"A": 32, "B": 96, "C": 32}
S = [160, 176]
P = [192, 200]
QC = 208
NEGM = 240
aQ = {"A": 0, "B": 32}
aK, aV, aVres = 64, 96, 128
sQ, sK, sV, sO = 8, 12, 16, 20
sW2048, sC, sMask, sT = 24, 25, 26, 27
sQoff = {"A": 28, "B": 29, "C": 30}
sOff = 32
sFlag = {"A": 44, "B": 46, "C": 48}
sTmp = 50

def vr(b, n): return f"v[{b}:{b+n-1}]"
def ar(b, n): return f"a[{b}:{b+n-1}]"
def sr(b, n): return f"s[{b}:{b+n-1}]"

KSLOT = {j: j for j in range(12)}
VSLOT = {j: 8 + j for j in range(4, 12)}
VSLOT.update({0: 10, 1: 18, 2: 11, 3: 19})
def k_addr(j, ks):
    off = KSLOT[j] * 8192 + 256 * (ks >> 1)
    if off < 65536: return vKa[ks & 1], off
    return vKb[ks & 1], off - 65536
def v_addr(j, t, u, b):
    off = VSLOT[j] * 8192 + t * 4096 + u * 2048 + b * 256
    if VSLOT[j] < 12: return vVa, off - 81920
    return vVb, off - 98304
def v_regs(j): return aVres + 32 * j if j < 4 else aV

class Op:
    __slots__ = ("text", "kind", "cost", "rel", "due", "needs", "tag", "gap", "deps", "trans", "prio", "done")
    def __init__(self, text, kind, cost=1, rel=0, due=10**9, needs=(), tag=None, deps=(), trans=False):
        self.text, self.kind, self.cost, self.rel, self.due = text, kind, cost, rel, due
        self.needs, self.tag, self.gap = list(needs), tag, None
        self.deps, self.trans, self.prio, self.done = list(deps), trans, 0.0, False

def chain(ops, after=()):
    prev = list(after)
    for o in ops:
        o.deps += prev; prev = [o]
    return ops

def gen(opt):
    NT_Q = " nt" if opt.ntq else ""
    NT_KV = " nt" if opt.ntkv else ""
    NT_O = ["", " nt", " sc1", " sc0 sc1", " sc0", " sc1 nt"][opt.nto]
    LA = opt.la
    out = []
    e = out.append

    mf = []
    idx = {}
    def qk(t, j, sb):
        idx[("QK", t, j)] = len(mf)
        for ks in range(8):
            bq = ar(aQ[t] + 4 * ks, 4) if t != "C" else vr(QC + 4 * ks, 4)
            c = vr(sb, 16) if ks else (vr(NEGM, 16) if (t == "C" and j > 0) else "0")
            needs = [("K", j, ks)]
            if j == 0 and t != "C": needs.append(("Q", t, ks))
            mf.append(Op(f"v_mfma_f32_32x32x16_bf16 {vr(sb,16)}, {ar(aK+4*ks,4)}, {bq}, {c}", "M", needs=needs))
    def pv(t, j, pb, blockmajor=False):
        idx[("PV", t, j)] = len(mf)
        order = [(tt, b) for tt in range(2) for b in range(4)]
        if blockmajor: order = [(tt, b) for b in range(4) for tt in range(2)]
        for (tt, b) in order:
            f = 4 * tt + b
            d = vr(O[t] + 16 * b, 16)
            c = "0" if (j == 0 and tt == 0) else d
            idx[("PVm", t, j, tt, b)] = len(mf)
            mf.append(Op(f"v_mfma_f32_32x32x16_bf16 {d}, {ar(v_regs(j)+4*f,4)}, {vr(pb+4*tt,4)}, {c}", "M",
                         needs=[("V", j, f)] if not (t == "C" and j < 4) else []))
    for j in range(12):
        qk("A", j, S[0])
        if j > 0: pv("B", j - 1, P[1])
        qk("B", j, S[1])
        pv("A", j, P[0])
    qk("C", 0, S[0]); pv("B", 11, P[1])
    for j in range(12):
        if j < 11: qk("C", j + 1, S[(j + 1) & 1])
        pv("C", j, P[j & 1], blockmajor=(j == 11))
    NM = len(mf)
    assert NM == 576

    fixed = [[] for _ in range(NM)]
    first = [[] for _ in range(NM)]
    cap = [6] * NM
    streams = []

    def pin(g, op): fixed[g].append(op)

    def dma_pair(kind, j):
        slot = KSLOT[j] if kind == "K" else VSLOT[j]
        srd = sK if kind == "K" else sV
        va = (vDK0, vDK1) if kind == "K" else (vDV, vDV)
        m0 = Op(f"s_add_u32 m0, s{sW2048}, {slot*8192}", "S")
        d = [Op(f"buffer_load_dwordx4 v{va[i]}, {sr(srd,4)}, s{sOff+j} offen offset:{1024*i}{NT_KV} lds", "G", 2,
                tag=("D" + kind, j, i)) for i in range(2)]
        return m0, d
    def q_load(t, ks):
        dst = ar(aQ[t] + 4 * ks, 4) if t != "C" else vr(QC + 4 * ks, 4)
        return Op(f"buffer_load_dwordx4 {dst}, v{vQ}, {sr(sQ,4)}, s{sQoff[t]} offen offset:{32*ks}{NT_Q}", "G", 2, tag=("Q", t, ks))
    def k_read(j, ks):
        a, off = k_addr(j, ks)
        return Op(f"ds_read_b128 {ar(aK+4*ks,4)}, v{a} offset:{off}", "L", 1, tag=("K", j, ks))
    def v_read(j, f, u):
        tt, b = f >> 2, f & 3
        a, off = v_addr(j, tt, u, b)
        return Op(f"ds_read_b64_tr_b16 {ar(v_regs(j)+4*f+2*u,2)}, v{a} offset:{off}", "L", 1,
                  tag=("V", j, f) if u else ("Vh", j, f))

    lastl = {}
    def softmax(t, j, sb, pb, rel, due0, due1, mode, after=()):
        ops = []
        pre, ex = {}, {}
        def mkpre(r):
            if mode == "fma": o = Op(f"v_fma_f32 v{sb+r}, v{sb+r}, s{sC}, v{vM[t]}", "V", deps=after)
            elif mode == "add": o = Op(f"v_add_f32 v{sb+r}, v{vM[t]}, v{sb+r}", "V", deps=after)
            else: return []
            pre[r] = o
            return [o]
        ops += mkpre(0) + mkpre(1)
        for i in range(8):
            r = 2 * i
            for x in (r, r + 1):
                ex[x] = Op(f"v_exp_f32 v{sb+x}, v{sb+x}", "V", 2, deps=[pre[x]] if x in pre else after, trans=True)
                ops.append(ex[x])
            if i < 7: ops += mkpre(r + 2) + mkpre(r + 3)
            for x in (r, r + 1):
                txt = f"v_mov_b32 v{vL[t]}, v{sb}" if (j == 0 and x == 0) else f"v_add_f32 v{vL[t]}, v{vL[t]}, v{sb+x}"
                a = Op(txt, "V", deps=[ex[x]] + ([lastl[t]] if t in lastl else []), due=due1)
                lastl[t] = a; ops.append(a)
            ops.append(Op(f"v_cvt_pk_bf16_f32 v{pb+i}, v{sb+r}, v{sb+r+1}", "V", deps=[ex[r], ex[r + 1]],
                          due=due0 if i < 4 else due1))
        for o in ops: o.rel = rel
        return ops
    def rowmax(t, sb, rel):
        m = vM[t]
        ops = [Op(f"v_max3_f32 v{m}, v{sb}, v{sb+1}, v{sb+2}", "V")]
        for r in range(3, 15, 2):
            ops.append(Op(f"v_max3_f32 v{m}, v{m}, v{sb+r}, v{sb+r+1}", "V"))
        ops.append(Op(f"v_max_f32 v{m}, v{m}, v{sb+15}", "V"))
        ops.append(Op(f"v_mov_b32 v{vT0}, v{m}", "V"))
        ops.append(Op("s_nop 1", "V", 2))
        ops.append(Op(f"v_permlane32_swap_b32 v{m}, v{vT0}", "V"))
        ops.append(Op(f"v_max_f32 v{m}, v{m}, v{vT0}", "V"))
        if t == "C": ops.append(Op(f"v_sub_f32 v{m}, 0, v{m}", "V"))
        else: ops.append(Op(f"v_mul_f32 v{m}, s{sC}, v{m}", "V")); ops.append(Op(f"v_sub_f32 v{m}, 0, v{m}", "V"))
        for o in ops: o.rel = rel
        return chain(ops)
    ecnt = [0]
    def epilogue(t, rel_l, rel_blk, due_blk):
        l, r = vL[t], vR[t]
        ops = [Op(f"v_mov_b32 v{vT1}, v{l}", "V"), Op("s_nop 1", "V", 2),
               Op(f"v_permlane32_swap_b32 v{l}, v{vT1}", "V"),
               Op(f"v_add_f32 v{l}, v{l}, v{vT1}", "V"),
               Op(f"v_rcp_f32 v{r}, v{l}", "V", 2, trans=True),
               Op(f"v_cmp_nle_f32_e64 {sr(sFlag[t],2)}, v{l}, s{sT}", "V")]
        for o in ops: o.rel = rel_l
        ops[0].deps.append(lastl[t])
        for b in range(4):
            for s in range(2):
                tmp = vE[ecnt[0] & 1]; ecnt[0] += 1
                base = O[t] + 16 * b + 8 * s
                blk = []
                for i in range(4):
                    blk.append(Op(f"v_mul_f32 v{base+2*i}, v{r}, v{base+2*i}", "V"))
                    blk.append(Op(f"v_mul_f32 v{base+2*i+1}, v{r}, v{base+2*i+1}", "V"))
                    blk.append(Op(f"v_cvt_pk_bf16_f32 v{tmp+i}, v{base+2*i}, v{base+2*i+1}", "V"))
                for o in blk: o.rel = rel_blk[b]; o.due = due_blk[b]
                st = Op(f"buffer_store_dwordx4 {vr(tmp,4)}, v{vQ}, {sr(sO,4)}, s{sQoff[t]} offen offset:{64*b+32*s}{NT_O}", "ST", 2,
                        tag=("ST", t, b, s))
                st.rel = rel_blk[b]; st.due = due_blk[b]
                ops += blk + [st]
        return ops
    def prescale(rel, due):
        ops = []
        for i in range(32):
            r = QC + i
            blk = [Op(f"v_lshlrev_b32 v{vX}, 16, v{r}", "V", needs=[("Q", "C", i >> 2)]),
                   Op(f"v_and_b32 v{r}, s{sMask}, v{r}", "V"),
                   Op(f"v_mul_f32 v{vX}, s{sC}, v{vX}", "V"),
                   Op(f"v_mul_f32 v{r}, s{sC}, v{r}", "V"),
                   Op(f"v_cvt_pk_bf16_f32 v{r}, v{vX}, v{r}", "V")]
            for o in blk: o.rel = rel[i >> 2]; o.due = due
            ops += blk
        return ops

    pro = []
    pro += [q_load("A", ks) for ks in range(8)]
    m0, d = dma_pair("K", 0); pro += [m0, Op("s_nop 0", "S")] + d
    pro += [q_load("B", ks) for ks in range(8)]
    for g in range(LA):
        for kind, j in (("V", g), ("K", g + 1)):
            m0, d = dma_pair(kind, j); pro += [m0, Op("s_nop 0", "S")] + d

    qc_issued = {}
    for j in range(12):
        a0 = idx[("QK", "A", j)]; b0 = idx[("QK", "B", j)]; pa = idx[("PV", "A", j)]
        bar = a0 + 7
        need = [("DV", j, 1)] + ([("DK", j + 1, 1)] if j < 11 else [])
        first[bar].append(Op("", "W", needs=need))
        pin(bar, Op("s_barrier", "B", 0)); cap[bar] = 2
        if j + LA <= 11:
            m0, d = dma_pair("V", j + LA); first[a0].append(m0); pin(a0 + 1, d[0]); pin(a0 + 2, d[1])
        if j + LA + 1 <= 11:
            m0, d = dma_pair("K", j + LA + 1); first[a0 + 3].append(m0); pin(a0 + 4, d[0]); pin(a0 + 5, d[1])
        if opt.qcp <= j < opt.qcp + 8 // opt.qcn:
            for i in range(opt.qcn):
                ks = (j - opt.qcp) * opt.qcn + i
                g = a0 + (6, 3, 0, 6)[i % 4]
                pin(g, q_load("C", ks)); qc_issued[ks] = j
        if j > 0:
            for f in range(8):
                for u in range(2): pin(a0 + 8 + 2 * f + u, v_read(j, f, u))
        else:
            for f in range(8):
                for u in range(2): pin(b0 + min(f, 4), v_read(j, f, u))
        for ks in range(8): pin(pa + ks, k_read((j + 1) % 12, ks))
        sa = []
        if j == 0: sa += rowmax("A", S[0], a0 + 9)
        sa += softmax("A", j, S[0], P[0], a0 + 9, pa - 2, pa + 2, "fma", after=sa[-1:])
        streams.append(sa)
        pbn = idx[("PV", "B", j)]
        sb_ = []
        if j == 0: sb_ += rowmax("B", S[1], b0 + 9)
        sb_ += softmax("B", j, S[1], P[1], b0 + 9, pbn - 2, pbn + 2, "fma", after=sb_[-1:])
        streams.append(sb_)
    c0 = idx[("QK", "C", 0)]
    rel = [idx[("QK", "A", min(11, qc_issued[k] + opt.qcd))] + 8 for k in range(8)]
    lowprio = [chain(prescale(rel, c0 - 2))]

    for j in range(12):
        q0 = idx[("QK", "C", j)]; p0 = idx[("PV", "C", j)]
        if j < 11:
            for ks in range(8): pin(q0 + ks, k_read(j + 1, ks))
        if 4 <= j + 1 <= 11:
            for f in range(8):
                for u in range(2): pin(p0 + f, v_read(j + 1, f, u))
        st = []; aft = []
        if j == 0:
            st += rowmax("C", S[0], q0 + 9); aft = st[-1:]
            st += [Op(f"v_mov_b32 v{NEGM+i}, v{vM['C']}", "V", rel=q0 + 9, due=idx[("QK", "C", 1)] - 2, deps=aft) for i in range(16)]
        d1 = p0 + 2 if j < 11 else p0 - 1
        st += softmax("C", j, S[j & 1], P[j & 1], q0 + 9, p0 - 2, d1, "add" if j == 0 else "raw", after=aft)
        streams.append(st)
    paA = idx[("PV", "A", 11)]; paB = idx[("PV", "B", 11)]; pc0 = idx[("PV", "C", 0)]; pcl = idx[("PV", "C", 11)]
    epiA = epilogue("A", paA + 3, [idx[("PVm", "A", 11, 1, b)] + 2 for b in range(4)], [pc0 + b - 1 for b in range(4)])
    epiB = epilogue("B", paB + 3, [idx[("PVm", "B", 11, 1, b)] + 2 for b in range(4)],
                    [pcl - 9] * 4 if not opt.bdue else [pc0 + 4 + opt.bdue * (b + 1) // 4 for b in range(4)])
    epiC = epilogue("C", pcl, [idx[("PVm", "C", 11, 1, b)] + 2 for b in range(4)], [10**9] * 4)
    nst = 0
    for o in epiB:
        if o.kind == "ST":
            o.rel = max(o.rel, pc0 + 8 + opt.stpace * nst); nst += 1
    lowprio.append(chain(epiA + epiB + epiC))

    allops = [o for st in streams + lowprio for o in st]
    for o in reversed(allops):
        for d in o.deps: d.due = min(d.due, o.due)
    for k, st in enumerate(streams):
        for n, o in enumerate(st): o.prio = k * 1000 + n
    for k, st in enumerate(lowprio):
        for n, o in enumerate(st): o.prio = 10**6 + k * 10000 + n

    sched = [[] for _ in range(NM)]
    load = [0] * NM
    pending = sorted(allops, key=lambda o: o.prio)
    for g in range(NM):
        used = sum(o.cost for o in fixed[g]) + max(0, len(first[g]) - 1)
        stores, valu = [], []
        cand = [o for o in pending if o.rel <= g]
        for o in cand:
            if o.kind == "ST" and all(d.done for d in o.deps) and (used + 2 <= cap[g] or o.due <= g):
                stores.append(o); o.done = True; o.gap = g; used += 2
        while True:
            best = None
            for o in cand:
                if o.done or not all(d.done for d in o.deps): continue
                forced = o.due <= g
                if o.kind == "ST" and not forced: continue
                if not forced and used + o.cost > cap[g]: continue
                hazard = bool(valu) and valu[-1].trans and valu[-1] in o.deps and not o.trans
                if hazard and not forced: continue
                key = (0 if forced else 1, hazard, o.prio)
                if best is None or key < best[0]: best = (key, o)
            if best is None: break
            key, o = best
            if key[1]: valu.append(Op("s_nop 0", "V")); used += 1
            valu.append(o); o.done = True; o.gap = g; used += o.cost + (1 if o.kind == "ST" else 0)
        pending = [o for o in pending if not o.done]
        sched[g] = list(fixed[g]) + stores + valu
        load[g] = used
    tail = []
    for o in pending:
        if tail and tail[-1].trans: tail.append(Op("s_nop 0", "V"))
        tail.append(o)

    lg_seq = {}; vm_seq = {}; nlg = [0]; nvm = [0]; lg_gap = []
    lg_done = [0]; vm_done = [0]
    body = []
    def issue(o, g):
        if o.kind == "L":
            nlg[0] += 1; lg_seq[o.tag] = nlg[0]; lg_gap.append(g)
        elif o.kind in ("G", "ST"):
            nvm[0] += 1; vm_seq[o.tag] = nvm[0]
        body.append("  " + o.text)
    def wait_for(needs, g, extend):
        lg = max([lg_seq[n] for n in needs if n in lg_seq] + [0])
        vm = max([vm_seq[n] for n in needs if n in vm_seq] + [0])
        for n in needs:
            assert n in lg_seq or n in vm_seq, (n, g)
        parts = []
        if vm > vm_done[0]:
            parts.append(f"vmcnt({nvm[0]-vm})"); vm_done[0] = vm
            assert nvm[0] - vm <= 63
        if lg > lg_done[0]:
            if extend:
                k = lg
                while k < nlg[0] and lg_gap[k] <= g - 3: k += 1
                lg = k
            parts.append(f"lgkmcnt({min(15, nlg[0]-lg)})"); lg_done[0] = lg
        if parts: body.append("  s_waitcnt " + " ".join(parts))
        return bool(parts)
    nstamp = [1]
    def stamp():
        if not opt.stamp: return
        k = nstamp[0]; nstamp[0] += 1
        if opt.enc and k not in opt.enc[:2]: return
        body.append(f"  {'s_memtime' if opt.stamp == 2 else 's_memrealtime'} s[{64+2*k}:{65+2*k}]")
        body.append("  s_waitcnt lgkmcnt(0)"); lg_done[0] = nlg[0]
    stamp_at = set()
    if opt.stamp:
        stamp_at = {idx[("QK", "A", j)] for j in (1, 2, 3, 4, 6, 8, 10)} | {idx[("QK", "C", j)] for j in (0, 1, 4, 8)}
    if opt.probe is not None and opt.probe.startswith("st:"):
        fl = opt.probe[3:].replace("+", " ").replace("def", "").replace("wb", "").replace("seg", "").replace("rnd", "")
        body.append("  v_lshlrev_b32 v30, 4, v0\n  s_lshl_b32 s57, s31, 10\n  s_lshl_b32 s58, s2, 12\n  s_add_u32 s58, s58, s57\n  v_add_u32 v31, s58, v30")
        for c in range(96):
            if "rnd" in opt.probe:
                body.append(f"  s_mov_b32 s58, {(0x9E3779B1 * (2*c+1)) & 0xffffffff | 1:#x}\n  v_add_u32 v31, 0x1234567, v31\n  v_mul_lo_u32 v{32+c}, v31, s58\n  v_lshrrev_b32 v29, 13, v{32+c}\n  v_xor_b32 v{32+c}, v29, v{32+c}\n  v_mul_lo_u32 v{32+c}, v{32+c}, s58")
            else: body.append(f"  v_mov_b32 v{32+c}, 0")
        body.append("  s_memrealtime s[98:99]")
        for c in range(24):
            if "seg" in opt.probe:
                body.append(f"  buffer_store_dwordx4 {vr(32+4*c,4)}, v{vQ}, {sr(sO,4)}, s{sQoff['ABC'[c//8]]} offen offset:{32*(c%8)} {fl}")
            else:
                body.append(f"  s_add_u32 s58, s57, {c*4096}\n  buffer_store_dwordx4 {vr(32+4*c,4)}, v30, {sr(sO,4)}, s58 offen {fl}")
        body.append("  s_waitcnt vmcnt(0)\n  s_memrealtime s[100:101]\n  s_waitcnt lgkmcnt(0)")
        if "wb" in opt.probe:
            body.append("""L_pw:
  s_memrealtime s[100:101]
  s_waitcnt lgkmcnt(0)
  s_sub_u32 s58, s100, s98
  s_cmp_lt_u32 s58, 800
  s_cbranch_scc1 L_pw
  s_mov_b32 s98, s100
  s_lshr_b32 s58, s2, 3
  s_xor_b32 s58, s58, 12
  s_or_b32 s58, s58, s31
  s_cmp_eq_u32 s58, 0
  s_cbranch_scc0 L_pw2
  buffer_wbl2 sc1
  s_waitcnt vmcnt(0)
  s_memrealtime s[100:101]
  s_waitcnt lgkmcnt(0)
L_pw2:
  s_memrealtime s[96:97]
  s_waitcnt lgkmcnt(0)
  s_sub_u32 s58, s96, s98
  s_cmp_lt_u32 s58, 800
  s_cbranch_scc1 L_pw2""")
        body.append("  s_barrier")
    elif opt.probe is not None:
        fl = opt.probe.replace("+", " ").replace("def", "")
        body.append("  v_lshlrev_b32 v30, 4, v0\n  s_lshl_b32 s57, s31, 10\n  s_memrealtime s[98:99]")
        n = 0
        for i in range(12):
            for srd, c in ((sQ, 2*i), (sQ, 2*i+1), (sK, 2*i), (sK, 2*i+1), (sV, 2*i), (sV, 2*i+1)):
                body.append(f"  s_add_u32 m0, s57, {(n % 36) * 4096}\n  s_add_u32 s58, s57, {c*4096}")
                body.append(f"  buffer_load_dwordx4 v30, {sr(srd,4)}, s58 offen {fl} lds")
                n += 1
                if n >= 12: body.append("  s_waitcnt vmcnt(11)")
        body.append("  s_waitcnt vmcnt(0)\n  s_memrealtime s[100:101]\n  s_waitcnt lgkmcnt(0)\n  s_barrier")
    for o in pro: issue(o, -10)
    if opt.wb:
        if opt.wb[0] == 1: body.append("  s_mov_b32 s59, s31")
        if opt.wb[0] == 3: body.append("  s_lshr_b32 s59, s2, 3\n  s_lshl_b32 s59, s59, 2\n  s_or_b32 s59, s59, s31")
        if opt.wb[0] == 2: body.append("  s_lshr_b32 s59, s2, 3\n  s_xor_b32 s59, s59, 5\n  s_or_b32 s59, s59, s31")
    stamp()
    body.append("  ; ---- first tile ----")
    wait_for([("DK", 0, 1)], -10, False)
    body.append("  s_barrier")
    stamp()
    for ks in range(8): issue(k_read(0, ks), -10)
    extra = 0
    for g in range(NM):
        late = [n for n in mf[g].needs if not ((n in lg_seq and lg_seq[n] <= lg_done[0]) or (n in vm_seq and vm_seq[n] <= vm_done[0]))]
        if late: wait_for(late, g, True)
        if g in stamp_at: stamp()
        body.append("  " + mf[g].text)
        needs = []
        for o in first[g]:
            if o.kind == "W": needs += o.needs
        for o in sched[g]: needs += o.needs
        if g + 1 < NM:
            needs += [n for n in mf[g + 1].needs if n in lg_seq or n in vm_seq]
        look = g + 2
        while look < NM and any(o.kind == "S" for o in first[look - 1]):
            needs += [n for n in mf[look].needs if n in lg_seq and lg_gap[lg_seq[n] - 1] <= g - 3]
            look += 1
        w = wait_for(needs, g, True)
        sc = [o for o in first[g] if o.kind == "S"]
        if w and sc: extra += 1
        for o in sc: issue(o, g)
        if opt.wb and (g - pc0) in opt.wb[1:]:
            if opt.wb[0] == 3: body.append(f"  s_cmp_eq_u32 s59, {4 * (5 + 8 * opt.wb[1:].index(g - pc0))}\n  s_cbranch_scc0 L_wb{g}")
            elif opt.wb[0]: body.append(f"  s_cmp_eq_u32 s59, 0\n  s_cbranch_scc0 L_wb{g}")
            body.append(f"  buffer_wbl2 sc1\nL_wb{g}:")
            nvm[0] += 1
        for o in sched[g]: issue(o, g)
    body.append("  ; ---- tail ----")
    body.append("  s_nop 7"); body.append("  s_nop 3")
    stamp()
    for o in tail: issue(o, NM)
    stamp()
    if opt.stamp:
        body.append("  s_waitcnt vmcnt(0)")
        stamp()
        n = nstamp[0]
    if opt.stamp and opt.enc:
        a, b, K, wg = opt.enc
        body.append(f"  s_sub_u32 s57, s{64+2*b}, s{64+2*a}\n  s_mul_i32 s57, s57, {K}")
        if opt.encg:
            body.append(f"""  s_load_dwordx2 s[60:61], s[0:1], 32
  s_waitcnt lgkmcnt(0)
  s_and_b32 s61, s61, 0xffff
  s_mov_b32 s62, 256
  s_mov_b32 s63, 0x20000
  s_mov_b64 s[58:59], exec
  s_mov_b64 exec, 1
  s_not_b32 s57, s{64+2*a}
  v_mov_b32 v20, s57
  v_mov_b32 v21, 0
  v_mov_b32 v22, s{64+2*b}
  v_mov_b32 v23, 1
  buffer_atomic_umax v20, v21, s[60:63], 0 offen sc1
  buffer_atomic_umax v22, v21, s[60:63], 0 offen offset:64 sc1
  s_waitcnt vmcnt(0)
  buffer_atomic_add v23, v21, s[60:63], 0 offen offset:128 sc1
  s_waitcnt vmcnt(0)
  s_mov_b32 s57, 0
  s_cmp_eq_u32 s2, {wg}
  s_cbranch_scc0 L_nopoll
  s_mov_b32 s56, 0
L_poll:
  buffer_load_dword v23, v21, s[60:63], 0 offen offset:128 sc1
  s_waitcnt vmcnt(0)
  v_readfirstlane_b32 s57, v23
  s_add_u32 s56, s56, 1
  s_cmp_gt_u32 s56, 2000
  s_cbranch_scc1 L_pollend
  s_cmp_lt_u32 s57, 1024
  s_cbranch_scc1 L_poll
L_pollend:
  buffer_load_dword v20, v21, s[60:63], 0 offen sc1
  buffer_load_dword v22, v21, s[60:63], 0 offen offset:64 sc1
  s_waitcnt vmcnt(0)
  v_not_b32 v20, v20
  v_sub_u32 v22, v22, v20
  s_nop 1
  v_readfirstlane_b32 s57, v22
  s_min_u32 s57, s57, 10000
  s_mul_i32 s57, s57, {K}
L_nopoll:
  s_mov_b64 exec, s[58:59]""")
        if opt.encw:
            body.append(f"""  s_mov_b32 s57, 0
  s_lshr_b32 s56, s2, 3
  s_cmp_eq_u32 s56, 12
  s_cbranch_scc0 L_now
  s_cmp_eq_u32 s31, 0
  s_cbranch_scc0 L_now
L_w0:
  s_memrealtime s[62:63]
  s_waitcnt lgkmcnt(0)
  s_sub_u32 s56, s62, s{64+2*b}
  s_cmp_lt_u32 s56, {opt.encw}
  s_cbranch_scc1 L_w0
  buffer_wbl2 sc1
  s_waitcnt vmcnt(0)
  s_memrealtime s[60:61]
  s_waitcnt lgkmcnt(0)
  s_sub_u32 s57, s60, s62
  s_mul_i32 s57, s57, {K}
L_now:""")
        if opt.stamp == 2: body.append("  s_lshr_b32 s57, s57, 6")
        if wg >= 0: body.append(f"  s_cmp_eq_u32 s2, {wg}\n  s_cselect_b32 s57, s57, 0")
        body.append("  s_memrealtime s[60:61]\n  s_waitcnt lgkmcnt(0)\nL_spin:\n  s_memrealtime s[62:63]\n  s_waitcnt lgkmcnt(0)")
        body.append("  s_sub_u32 s62, s62, s60\n  s_cmp_lt_u32 s62, s57\n  s_cbranch_scc1 L_spin")
    elif opt.stamp:
        body.append("  s_load_dwordx2 s[60:61], s[0:1], 40")
        body.append("  s_waitcnt lgkmcnt(0)")
        body.append("  s_and_b32 s61, s61, 0xffff\n  s_mov_b32 s62, 0x1000000\n  s_mov_b32 s63, 0x20000")
        body.append("  s_lshl_b32 s57, s2, 2\n  s_add_u32 s57, s57, s31\n  s_lshl_b32 s57, s57, 7")
        body.append("  v_mov_b32 v21, 0")
        for k in range(n):
            body.append(f"  v_mov_b32 v20, s{64+2*k}")
            body.append(f"  buffer_store_dword v20, v21, s[60:63], s57 offen offset:{4*k}")
        body.append("  s_waitcnt vmcnt(0)")
    if opt.verbose:
        over = sum(max(0, load[g] - cap[g]) for g in range(NM))
        print(f"; overflow slots {over}, extra scalar {extra}, tail ops {len(tail)}", file=sys.stderr)
        for g0 in range(0, NM, 32):
            print(g0, " ".join(str(load[g]) for g in range(g0, min(NM, g0 + 32))), file=sys.stderr)

    e(HEADER.rstrip("\n"))
    e(f""".amdgcn_target "amdgcn-amd-amdhsa--gfx950"
.text
.globl {KNAME}
.p2align 8
.type {KNAME},@function
{KNAME}:
  s_cmp_ge_u32 s2, 256
  s_cbranch_scc1 L_end
{"  s_memrealtime s[64:65]" if opt.stamp == 1 else "  s_memtime s[64:65]" if opt.stamp == 2 else ""}
  s_load_dwordx4 s[4:7], s[0:1], 0
  s_load_dwordx4 s[52:55], s[0:1], 16
  v_lshrrev_b32 v1, 6, v0
  v_and_b32 v0, 63, v0
  s_and_b32 s3, s2, 7
  v_readfirstlane_b32 s31, v1
  s_lshr_b32 s50, s2, 4
  s_lshl_b32 s50, s50, 3
  s_add_u32 s3, s3, s50
  s_lshr_b32 s50, s2, 3
  s_and_b32 s50, s50, 1
  s_lshl_b32 s51, s3, 1
  s_add_u32 s51, s51, s50
  s_mul_i32 s3, s3, 98304
  s_mul_i32 s51, s51, 98304
  s_lshl_b32 s{sW2048}, s31, 11
  s_lshl_b32 s{sQoff['A']}, s31, 13
  s_add_u32 s{sQoff['B']}, s{sQoff['A']}, 32768
  s_add_u32 s{sQoff['C']}, s{sQoff['A']}, 65536
  s_mov_b32 s{sC}, {f2u(C_SCALE):#x}
  s_mov_b32 s{sMask}, 0xffff0000
  s_mov_b32 s{sT}, {f2u(2.0**30):#x}""")
    for j in range(12): e(f"  s_mov_b32 s{sOff+j}, {8192*j}")
    e(f"""  v_and_b32 v20, 31, v0
  v_lshrrev_b32 v21, 5, v0
  v_lshlrev_b32 v{vQ}, 8, v20
  v_lshl_add_u32 v{vQ}, v21, 4, v{vQ}
  v_and_b32 v22, 3, v0
  v_bfe_u32 v23, v0, 2, 2
  v_lshrrev_b32 v24, 4, v0
  v_lshlrev_b32 v{vDV}, 8, v23
  v_lshl_add_u32 v{vDV}, v24, 6, v{vDV}
  v_add_u32 v{vDV}, s{sW2048}, v{vDV}
  s_lshl_b32 s50, s31, 1
  s_and_b32 s50, s50, 3
  v_xor_b32 v25, s50, v22
  v_lshl_add_u32 v{vDK0}, v25, 4, v{vDV}
  v_xor_b32 v{vDK1}, 16, v{vDK0}
  v_lshl_add_u32 v{vDV}, v22, 4, v{vDV}
  s_waitcnt lgkmcnt(0)
  s_add_u32 s{sQ}, s4, s51
  s_addc_u32 s{sQ+1}, s5, 0
  s_and_b32 s{sQ+1}, s{sQ+1}, 0xffff
  s_mov_b32 s{sQ+2}, 98304
  s_mov_b32 s{sQ+3}, 0x20000
  s_add_u32 s{sK}, s6, s3
  s_addc_u32 s{sK+1}, s7, 0
  s_and_b32 s{sK+1}, s{sK+1}, 0xffff
  s_mov_b32 s{sK+2}, 98304
  s_mov_b32 s{sK+3}, 0x20000
  s_add_u32 s{sV}, s52, s3
  s_addc_u32 s{sV+1}, s53, 0
  s_and_b32 s{sV+1}, s{sV+1}, 0xffff
  s_mov_b32 s{sV+2}, 98304
  s_mov_b32 s{sV+3}, 0x20000
  s_add_u32 s{sO}, s54, s51
  s_addc_u32 s{sO+1}, s55, 0
  s_and_b32 s{sO+1}, s{sO+1}, 0xffff
  s_mov_b32 s{sO+2}, 98304
  s_mov_b32 s{sO+3}, 0x20000""")
    addr = f"""  v_and_b32 v20, 31, v0
  v_lshrrev_b32 v21, 5, v0
  v_lshrrev_b32 v22, 2, v20
  v_and_b32 v23, 3, v20
  v_lshlrev_b32 v24, 10, v22
  v_lshl_add_u32 v24, v23, 6, v24
  v_and_b32 v22, 3, v22
  v_xor_b32 v22, v22, v21
  v_lshl_add_u32 v{vKa[0]}, v22, 4, v24
  v_xor_b32 v{vKa[1]}, 32, v{vKa[0]}
  v_add_u32 v{vKb[0]}, 0x10000, v{vKa[0]}
  v_add_u32 v{vKb[1]}, 0x10000, v{vKa[1]}
  v_bfe_u32 v22, v0, 2, 2
  v_lshlrev_b32 v24, 10, v21
  v_lshl_add_u32 v24, v22, 6, v24
  v_bfe_u32 v22, v0, 4, 1
  v_lshl_add_u32 v24, v22, 5, v24
  v_and_b32 v22, 1, v0
  v_lshl_add_u32 v24, v22, 4, v24
  v_bfe_u32 v22, v0, 1, 1
  v_lshl_add_u32 v24, v22, 3, v24
  v_add_u32 v{vVa}, 81920, v24
  v_add_u32 v{vVb}, 98304, v24"""
    k = body.index("  ; ---- first tile ----")
    e("\n".join(body[:k])); e(addr); e("\n".join(body[k:]))
    e(slow_path(NT_O))
    e(f"""L_end:
  s_endpgm
.section .rodata,"a"
.p2align 6
.amdhsa_kernel {KNAME}
  .amdhsa_next_free_vgpr 512
  .amdhsa_next_free_sgpr 102
  .amdhsa_accum_offset 256
  .amdhsa_group_segment_fixed_size 0
  .amdhsa_kernarg_size 48
  .amdhsa_user_sgpr_count 2
  .amdhsa_user_sgpr_kernarg_segment_ptr 1
  .amdhsa_system_sgpr_workgroup_id_x 1
.end_amdhsa_kernel""")
    return "\n".join(out) + "\n"

def slow_path(NT_O):
    o = []; e = o.append
    q, kf, ob, s, p, vt, vf = 32, 64, 96, 160, 192, 200, 232
    vm, vl, vg, vt0 = 14, 11, 20, 18
    e("  s_nop 4")
    e(f"  s_or_b64 s[50:51], {sr(sFlag['A'],2)}, {sr(sFlag['B'],2)}")
    e(f"  s_or_b64 s[50:51], s[50:51], {sr(sFlag['C'],2)}")
    e("  s_cbranch_scc0 L_end")
    e("  s_mov_b32 s56, 0")
    for i, t in enumerate("ABC"):
        e(f"  s_cmp_lg_u64 {sr(sFlag[t],2)}, 0")
        e(f"  s_cselect_b32 s57, {1<<i}, 0")
        e("  s_or_b32 s56, s56, s57")
    e(f"""  v_and_b32 v21, 31, v0
  v_lshrrev_b32 v22, 5, v0
  v_lshlrev_b32 v{vg}, 10, v22
  v_bfe_u32 v23, v21, 4, 1
  v_lshl_add_u32 v{vg}, v23, 5, v{vg}
  v_bfe_u32 v23, v21, 2, 1
  v_lshl_add_u32 v{vg}, v23, 4, v{vg}
  v_bfe_u32 v23, v21, 3, 1
  v_lshl_add_u32 v{vg}, v23, 3, v{vg}
  v_and_b32 v23, 3, v21
  v_lshl_add_u32 v{vg}, v23, 1, v{vg}
  s_mov_b32 s57, 0
  s_mov_b32 s58, s{sQoff['A']}
L_slow_tile:
  s_bitcmp1_b32 s56, s57
  s_cbranch_scc0 L_slow_next
  s_waitcnt vmcnt(0)""")
    for ks in range(8): e(f"  buffer_load_dwordx4 {vr(q+4*ks,4)}, v{vQ}, {sr(sQ,4)}, s58 offen offset:{32*ks}")
    def qk():
        for ks in range(8): e(f"  buffer_load_dwordx4 {vr(kf+4*ks,4)}, v{vQ}, {sr(sK,4)}, s59 offen offset:{32*ks}")
        e("  s_waitcnt vmcnt(0)")
        for ks in range(8):
            e(f"  v_mfma_f32_32x32x16_bf16 {vr(s,16)}, {vr(kf+4*ks,4)}, {vr(q+4*ks,4)}, {vr(s,16) if ks else '0'}")
        e("  s_nop 15")
    e(f"  v_mov_b32 v{vm}, 0xff800000")
    e("  s_mov_b32 s59, 0")
    e("L_slow_max:")
    qk()
    for r in range(0, 16, 2): e(f"  v_max3_f32 v{vm}, v{vm}, v{s+r}, v{s+r+1}")
    e("""  s_add_u32 s59, s59, 8192
  s_cmp_lt_u32 s59, 98304
  s_cbranch_scc1 L_slow_max""")
    e(f"""  v_mov_b32 v{vt0}, v{vm}
  s_nop 1
  v_permlane32_swap_b32 v{vm}, v{vt0}
  v_max_f32 v{vm}, v{vm}, v{vt0}
  v_mov_b32 v{vl}, 0""")
    for r in range(64): e(f"  v_mov_b32 v{ob+r}, 0")
    e("  s_mov_b32 s59, 0")
    e("L_slow_pv:")
    qk()
    for r in range(16): e(f"  v_sub_f32 v{s+r}, v{s+r}, v{vm}")
    for r in range(16): e(f"  v_mul_f32 v{s+r}, s{sC}, v{s+r}")
    for r in range(16): e(f"  v_exp_f32 v{s+r}, v{s+r}")
    e("  s_nop 1")
    for r in range(16): e(f"  v_add_f32 v{vl}, v{vl}, v{s+r}")
    for i in range(8): e(f"  v_cvt_pk_bf16_f32 v{p+i}, v{s+2*i}, v{s+2*i+1}")
    for t in range(2):
        e(f"  s_add_u32 s60, s59, {4096*t}")
        for b in range(4):
            for jj in range(8):
                e(f"  buffer_load_ushort v{vt+8*b+jj}, v{vg}, {sr(sV,4)}, s60 offen offset:{(8*(jj>>2)+(jj&3))*256+64*b}")
        e("  s_waitcnt vmcnt(0)")
        for b in range(4):
            for i in range(4):
                e(f"  v_lshl_or_b32 v{vf+4*b+i}, v{vt+8*b+2*i+1}, 16, v{vt+8*b+2*i}")
        e("  s_nop 1")
        for b in range(4):
            e(f"  v_mfma_f32_32x32x16_bf16 {vr(ob+16*b,16)}, {vr(vf+4*b,4)}, {vr(p+4*t,4)}, {vr(ob+16*b,16)}")
        e("  s_nop 7")
    e("""  s_add_u32 s59, s59, 8192
  s_cmp_lt_u32 s59, 98304
  s_cbranch_scc1 L_slow_pv
  s_nop 15""")
    e(f"""  v_mov_b32 v{vt0}, v{vl}
  s_nop 1
  v_permlane32_swap_b32 v{vl}, v{vt0}
  v_add_f32 v{vl}, v{vl}, v{vt0}
  v_rcp_f32 v{vl}, v{vl}
  s_nop 1""")
    for b in range(4):
        for ss in range(2):
            base = ob + 16 * b + 8 * ss; tmp = q + 8 * b + 4 * ss
            for i in range(8): e(f"  v_mul_f32 v{base+i}, v{vl}, v{base+i}")
            for i in range(4): e(f"  v_cvt_pk_bf16_f32 v{tmp+i}, v{base+2*i}, v{base+2*i+1}")
            e(f"  buffer_store_dwordx4 {vr(tmp,4)}, v{vQ}, {sr(sO,4)}, s58 offen offset:{64*b+32*ss}")
    e("""L_slow_next:
  s_add_u32 s57, s57, 1
  s_add_u32 s58, s58, 32768
  s_cmp_lt_u32 s57, 3
  s_cbranch_scc1 L_slow_tile""")
    return "\n".join(o)

if __name__ == "__main__":
    ap = argparse.ArgumentParser()
    ap.add_argument("-o", default="standalone__gqa_softmax__near_ridge.s")
    ap.add_argument("--la", type=int, default=4)
    ap.add_argument("--qcp", type=int, default=2)
    ap.add_argument("--qcn", type=int, default=2)
    ap.add_argument("--qcd", type=int, default=3)
    ap.add_argument("--stpace", type=int, default=14)
    ap.add_argument("--ntq", type=int, default=0)
    ap.add_argument("--ntkv", type=int, default=0)
    ap.add_argument("--nto", type=int, default=0)
    ap.add_argument("--verbose", type=int, default=1)
    ap.add_argument("--stamp", type=int, default=0)
    ap.add_argument("--enc", type=lambda x: [int(y) for y in x.split(",")], default=None)
    ap.add_argument("--encg", type=int, default=0)
    ap.add_argument("--encw", type=int, default=0)
    ap.add_argument("--probe", default=None)
    ap.add_argument("--wb", type=lambda x: [int(y) for y in x.split(",")], default=None)
    ap.add_argument("--bdue", type=int, default=0)
    opt = ap.parse_args()
    open(opt.o, "w").write(gen(opt))
```

```python
import sys, math, argparse, struct

KNAME = "standalone__gqa_softmax__near_ridge_kernel"
HEADER = """; Kernarg layout for this problem (48 bytes, ptrs only, base s[0:1]):
; @launch grid=(256,1,1) block=(256,1,1) lds=163840
"""

C_SCALE = (128 ** -0.5) * math.log2(math.e)
def f2u(x): return struct.unpack("<I", struct.pack("<f", x))[0]

vST, vDK0, vDK1, vDV = 1, 2, 3, 4
vKa = [5, 6]; vKb = [7, 8]; vVa, vVb = 9, 10
vL = {"A": 11, "B": 12, "C": 13}
vM = {"A": 14, "B": 15, "C": 14}
vR = {"A": 16, "B": 17, "C": 16}
vT0, vT1 = 18, 19
vX = 20
vSW = [21, 22]; vSR = 23
vE = [24, 28]
O = {"A": 32, "B": 96, "C": 32}
S = [160, 176]
P = [192, 200]
QC = 208
NEGM = 240
vQD = [240, 241, 242, 243]
vQA = [244, 245]; vQB = [246, 247]
aQ = {"A": 0, "B": 32}
aRB = {"A": 0, "B": 32, "C": 0}
aK, aV, aVres = 64, 96, 128
sQ, sK, sV, sO = 8, 12, 16, 20
sW2048, sC, sMask, sT = 24, 25, 26, 27
sQoff = {"A": [28, 56], "B": [29, 57], "C": [30, 58]}
sW = 31
sOff = 32
sFlag = {"A": 44, "B": 46, "C": 48}
sQL = {"A": 59, "B": 60, "C": 60}

def vr(b, n): return f"v[{b}:{b+n-1}]"
def ar(b, n): return f"a[{b}:{b+n-1}]"
def sr(b, n): return f"s[{b}:{b+n-1}]"

KSLOT = {j: j for j in range(12)}
VSLOT = {j: 23 - j for j in range(4, 12)}
VSLOT.update({j: 6 + j for j in range(4)})
QSLOT = {"A": 16, "B": 10, "C": 10}
STG = 11 * 8192
CORD = [11] + list(range(11))
def k_addr(j, ks):
    off = KSLOT[j] * 8192 + 256 * (ks >> 1)
    if off < 65536: return vKa[ks & 1], off
    return vKb[ks & 1], off - 65536
def v_addr(j, t, u, b):
    off = VSLOT[j] * 8192 + t * 4096 + u * 2048 + b * 256
    if j < 4: return vVa, off - 49152
    return vVb, off - 98304
def v_regs(j): return aVres + 32 * j if j < 4 else aV

class Op:
    __slots__ = ("text", "kind", "cost", "rel", "due", "needs", "tag", "gap", "deps", "lat", "trans", "prio", "done")
    def __init__(self, text, kind, cost=1, rel=0, due=10**9, needs=(), tag=None, deps=(), trans=False):
        self.text, self.kind, self.cost, self.rel, self.due = text, kind, cost, rel, due
        self.needs, self.tag, self.gap = list(needs), tag, None
        self.deps, self.lat, self.trans, self.prio, self.done = list(deps), [], trans, 0.0, False

def chain(ops, after=()):
    prev = list(after)
    for o in ops:
        o.deps += prev; prev = [o]
    return ops

def gen(opt):
    FL = lambda s: (" " + s.replace("+", " ")) if s else ""
    NT_Q, NT_KV, NT_O = FL(opt.fq), FL(opt.fkv), FL(opt.fo)
    out = []
    e = out.append

    mf = []; idx = {}
    def qk(t, j, sb, first):
        idx[("QK", t, j)] = len(mf)
        for ks in range(8):
            bq = ar(aQ[t] + 4 * ks, 4) if t != "C" else vr(QC + 4 * ks, 4)
            c = vr(sb, 16) if ks else (vr(NEGM, 16) if (t == "C" and not first) else "0")
            needs = [("K", j, ks)]
            if first and t != "C": needs.append(("Q", t, ks))
            mf.append(Op(f"v_mfma_f32_32x32x16_bf16 {vr(sb,16)}, {ar(aK+4*ks,4)}, {bq}, {c}", "M", needs=needs))
    def pv(t, j, pb, first, blockmajor=False):
        idx[("PV", t, j)] = len(mf)
        order = [(tt, b) for tt in range(2) for b in range(4)]
        if blockmajor: order = [(tt, b) for b in range(4) for tt in range(2)]
        for (tt, b) in order:
            f = 4 * tt + b
            d = vr(O[t] + 16 * b, 16)
            c = "0" if (first and tt == 0) else d
            idx[("PVm", t, j, tt, b)] = len(mf)
            mf.append(Op(f"v_mfma_f32_32x32x16_bf16 {d}, {ar(v_regs(j)+4*f,4)}, {vr(pb+4*tt,4)}, {c}", "M",
                         needs=[("V", j, f)]))
    for j in range(12):
        qk("A", j, S[0], j == 0)
        if j > 0: pv("B", j - 1, P[1], j == 1)
        qk("B", j, S[1], j == 0)
        pv("A", j, P[0], j == 0, blockmajor=(j == 11 and opt.bma))
    qk("C", CORD[0], S[0], True); pv("B", 11, P[1], False)
    for n in range(12):
        if n < 11: qk("C", CORD[n + 1], S[(n + 1) & 1], False)
        pv("C", CORD[n], P[n & 1], n == 0, blockmajor=(n == 11 or (n == 0 and opt.bmc)))
    NM = len(mf)
    assert NM == 576
    NV = 60
    NG = NM + NV
    fixed = [[] for _ in range(NG)]
    first = [[] for _ in range(NG)]
    post = [[] for _ in range(NG)]
    cap = [6] * NM + [8] * NV
    streams = []
    def pin(g, op): fixed[g].append(op)

    def kv_dma(kind, j):
        slot = KSLOT[j] if kind == "K" else VSLOT[j]
        srd = sK if kind == "K" else sV
        va = (vDK0, vDK1) if kind == "K" else (vDV, vDV)
        m0 = Op(f"s_add_u32 m0, s{sW2048}, {slot*8192}", "S", tag=("D" + kind, j))
        return [m0] + [Op(f"buffer_load_dwordx4 v{va[i]}, {sr(srd,4)}, s{sOff+j} offen offset:{1024*i}{NT_KV} lds", "G", 2,
                          tag=("D" + kind, j, i)) for i in range(2)]
    def q_dma(t, half, lo=0, hi=4):
        m0 = Op(f"s_add_u32 m0, s{sQL[t]}, {4096*half}", "S", tag=("DQ", t, half))
        return [m0] + [Op(f"buffer_load_dwordx4 v{vQD[i]}, {sr(sQ,4)}, s{sQoff[t][half]} offen offset:{1024*i}{NT_Q} lds", "G", 2,
                          tag=("DQ", t, 4 * half + i)) for i in range(lo, hi)]
    def q_read(t, ks):
        dst = ar(aQ[t] + 4 * ks, 4) if t != "C" else vr(QC + 4 * ks, 4)
        a = (vQA if t == "A" else vQB)[ks & 1]
        return Op(f"ds_read_b128 {dst}, v{a} offset:{256*(ks>>1)}", "L", 1, tag=("Q", t, ks))
    def k_read(j, ks):
        a, off = k_addr(j, ks)
        return Op(f"ds_read_b128 {ar(aK+4*ks,4)}, v{a} offset:{off}", "L", 1, tag=("K", j, ks))
    def v_read(j, f, u):
        tt, b = f >> 2, f & 3
        a, off = v_addr(j, tt, u, b)
        return Op(f"ds_read_b64_tr_b16 {ar(v_regs(j)+4*f+2*u,2)}, v{a} offset:{off}", "L", 1,
                  tag=("V", j, f) if u else ("Vh", j, f))
    def place(group, g0, step=1):
        first[g0].append(group[0])
        for i, d in enumerate(group[1:]): pin(g0 + 1 + i * step, d)

    lastl = {}
    def softmax(t, firstt, sb, pb, rel, due0, due1, mode, after=()):
        ops = []; pre, ex = {}, {}
        def mkpre(r):
            if mode == "fma": o = Op(f"v_fma_f32 v{sb+r}, v{sb+r}, s{sC}, v{vM[t]}", "V", deps=after)
            elif mode == "add": o = Op(f"v_add_f32 v{sb+r}, v{vM[t]}, v{sb+r}", "V", deps=after)
            else: return []
            pre[r] = o
            return [o]
        ops += mkpre(0) + mkpre(1)
        for i in range(8):
            r = 2 * i
            for x in (r, r + 1):
                ex[x] = Op(f"v_exp_f32 v{sb+x}, v{sb+x}", "V", 2, deps=[pre[x]] if x in pre else after, trans=True)
                ops.append(ex[x])
            if i < 7: ops += mkpre(r + 2) + mkpre(r + 3)
            for x in (r, r + 1):
                if firstt and x == 0: continue
                if firstt and x == 1:
                    a = Op(f"v_add_f32 v{vL[t]}, v{sb}, v{sb+1}", "V", deps=[ex[0], ex[1]], due=due1)
                else:
                    a = Op(f"v_add_f32 v{vL[t]}, v{vL[t]}, v{sb+x}", "V", deps=[ex[x], lastl[t]], due=due1)
                lastl[t] = a; ops.append(a)
            ops.append(Op(f"v_cvt_pk_bf16_f32 v{pb+i}, v{sb+r}, v{sb+r+1}", "V", deps=[ex[r], ex[r + 1]],
                          due=due0 if i < 4 else due1))
        for o in ops: o.rel = rel
        return ops
    def rowmax(t, sb, rel):
        m = vM[t]
        ops = [Op(f"v_max3_f32 v{m}, v{sb}, v{sb+1}, v{sb+2}", "V")]
        for r in range(3, 15, 2):
            ops.append(Op(f"v_max3_f32 v{m}, v{m}, v{sb+r}, v{sb+r+1}", "V"))
        ops.append(Op(f"v_max_f32 v{m}, v{m}, v{sb+15}", "V"))
        ops.append(Op(f"v_mov_b32 v{vT0}, v{m}", "V"))
        ops.append(Op("s_nop 1", "V", 2))
        ops.append(Op(f"v_permlane32_swap_b32 v{m}, v{vT0}", "V"))
        if t == "C": ops.append(Op(f"v_min_f32 v{m}, -v{m}, -v{vT0}", "V"))
        else:
            ops.append(Op(f"v_max_f32 v{m}, v{m}, v{vT0}", "V"))
            ops.append(Op(f"v_mul_f32 v{m}, -v{m}, s{sC}", "V"))
        for o in ops: o.rel = rel
        return chain(ops)
    ecnt = [0]; stg = {"dr": [], "dw": [None, None]}
    def epilogue(t, rel_l, rel_blk, due_blk, prev):
        l, r = vL[t], vR[t]
        head = [Op(f"v_mov_b32 v{vT1}, v{l}", "V"), Op("s_nop 1", "V", 2),
                Op(f"v_permlane32_swap_b32 v{l}, v{vT1}", "V"),
                Op(f"v_add_f32 v{l}, v{l}, v{vT1}", "V"),
                Op(f"v_rcp_f32 v{r}, v{l}", "V", 2, trans=True),
                Op(f"v_cmp_nle_f32_e64 {sr(sFlag[t],2)}, v{l}, s{sT}", "V")]
        for o in head: o.rel = rel_l
        chain(head, [lastl[t]] + prev)
        ops = list(head); last = head[-1]
        for b in range(4):
            dws = []
            for s in range(2):
                k = ecnt[0] & 1; tmp = vE[k]; ecnt[0] += 1
                base = O[t] + 16 * b + 8 * s
                blk = []
                for i in range(4):
                    blk.append(Op(f"v_mul_f32 v{base+2*i}, v{r}, v{base+2*i}", "V"))
                    blk.append(Op(f"v_mul_f32 v{base+2*i+1}, v{r}, v{base+2*i+1}", "V"))
                    blk.append(Op(f"v_cvt_pk_bf16_f32 v{tmp+i}, v{base+2*i}, v{base+2*i+1}", "V"))
                for o in blk: o.rel = rel_blk[b]; o.due = due_blk[b]
                chain(blk, [last]); last = blk[-1]
                if stg["dw"][k]: blk[2].deps.append(stg["dw"][k])
                dw = Op(f"ds_write_b128 v{vSW[s]}, {vr(tmp,4)}", "DW", opt.dwc, rel=rel_blk[b], deps=[last] + stg["dr"],
                        tag=("DW", t, b, s))
                stg["dw"][k] = dw; dws.append(dw)
                ops += blk + [dw]
            stg["dr"] = []
            for u in range(2):
                dst = ar(aRB[t] + 8 * b + 4 * u, 4)
                dr = Op(f"ds_read_b128 {dst}, v{vSR} offset:{1024*u}", "L", 1, rel=rel_blk[b], deps=dws, tag=("DR", t, b, u))
                st = Op(f"buffer_store_dwordx4 {dst}, v{vST}, {sr(sO,4)}, s{sQoff[t][u]} offen offset:{64*b}{NT_O}", "ST", 2,
                        rel=rel_blk[b], deps=[dr], needs=[("DR", t, b, u)], tag=("ST", t, b, u))
                st.lat = [(dr, opt.stlat)]
                stg["dr"].append(dr); ops += [dr, st]
        return ops, [last]
    def prescale(rel, due):
        ops = []
        for i in range(32):
            r = QC + i
            blk = [Op(f"v_lshlrev_b32 v{vX}, 16, v{r}", "V", needs=[("Q", "C", i >> 2)]),
                   Op(f"v_and_b32 v{r}, s{sMask}, v{r}", "V"),
                   Op(f"v_mul_f32 v{vX}, s{sC}, v{vX}", "V"),
                   Op(f"v_mul_f32 v{r}, s{sC}, v{r}", "V"),
                   Op(f"v_cvt_pk_bf16_f32 v{r}, v{vX}, v{r}", "V")]
            for o in blk: o.rel = rel; o.due = due
            ops += blk
        return ops

    W = lambda *needs: Op("", "W", 0, needs=needs)
    BAR = lambda: Op("s_barrier", "B", 0)
    NOP0 = lambda: Op("s_nop 0", "S")
    def flat(groups):
        r = []
        for gp in groups: r += [gp[0], NOP0()] + gp[1:]
        return r
    a00 = idx[("QK", "A", 0)]; b00 = idx[("QK", "B", 0)]; pa0 = idx[("PV", "A", 0)]
    early = [q_dma("A", 0), q_dma("A", 1), kv_dma("K", 0), kv_dma("V", 0), kv_dma("K", 1), q_dma("B", 0), q_dma("B", 1),
             kv_dma("V", 1), kv_dma("K", 2), kv_dma("V", 2), kv_dma("K", 3), kv_dma("V", 3), kv_dma("K", 4)]
    n1, n2, n3 = opt.early
    pro = flat(early[:n1])
    g = a00
    for gp in early[n1:n1 + n2]:
        first[g].append(gp[0])
        for i, d in enumerate(gp[1:]): pin(g + 1 + i // 2, d)
        g += 1 + len(gp) // 2
    assert g <= a00 + 8
    win = a00 + 7
    cap[win] = 10**6
    post[win] += flat(early[n1 + n2:n1 + n2 + n3])
    post[win] += [W(("DV", 0, 1), ("DK", 1, 1)), BAR()] + [v_read(0, f, u) for f in range(8) for u in range(2)]
    post[win] += [W(("DQ", "B", 7))] + [q_read("B", ks) for ks in range(8)]
    g = b00
    for gp in early[n1 + n2 + n3:]:
        place(gp, g); g += 3
    for j in range(4, 12):
        place(kv_dma("V", j), idx[("QK", "A", max(1, j - opt.la))])
    for j in range(5, 12):
        place(kv_dma("K", j), idx[("QK", "A", max(1, j - 1 - opt.la))] + 3)
    assert opt.la <= 3
    for half, p in enumerate(opt.qcp):
        gq = idx[("QK", "A", p)] + 8 if p > 0 else pa0
        place(q_dma("C", half), gq, step=opt.qcs)
    gq = idx[("QK", "B", opt.qcr)]
    first[gq].append(W(("DQ", "C", 7)))
    for ks in range(8): pin(gq + ks, q_read("C", ks))
    kfirst = min(max(1, 10 - 1 - opt.la), max(1, 10 - opt.la))
    assert kfirst >= opt.qcr + 2, "slots 10..13 are still in use by Q of tile C"
    first[idx[("QK", "A", opt.qcr + 1)] + 7].append(W(("Q", "C", 7)))

    for j in range(12):
        a0 = idx[("QK", "A", j)]; b0 = idx[("QK", "B", j)]; pa = idx[("PV", "A", j)]
        if j > 0:
            bar = a0 + 7
            first[bar].append(W(*([("DV", j, 1)] + ([("DK", j + 1, 1)] if j < 11 else []))))
            pin(bar, BAR()); cap[bar] = 2
            for f in range(8):
                for u in range(2): pin(a0 + 8 + 2 * f + u, v_read(j, f, u))
        if j < 11:
            for ks in range(8): pin(pa + ks, k_read(j + 1, ks))
        sa = []
        ra = a0 + 9 if j else win
        if j == 0: sa += [Op("s_nop 11", "V", 12, rel=win)]; sa += chain(rowmax("A", S[0], ra), sa)
        d1 = pa + 2 if not (j == 11 and opt.bma) else pa - 1
        sa += softmax("A", j == 0, S[0], P[0], ra, pa - 2, d1, "fma", after=sa[-1:])
        streams.append(sa)
        pbn = idx[("PV", "B", j)]
        sb_ = []
        if j == 0: sb_ += rowmax("B", S[1], b0 + 9)
        sb_ += softmax("B", j == 0, S[1], P[1], b0 + 9, pbn - 2, pbn + 2, "fma", after=sb_[-1:])
        streams.append(sb_)
    c0 = idx[("QK", "C", CORD[0])]
    lowprio = [chain(prescale(gq + 10, c0 - 2))]

    for n in range(12):
        j = CORD[n]
        q0 = idx[("QK", "C", j)]; p0 = idx[("PV", "C", j)]
        if n < 11:
            for ks in range(8): pin(q0 + ks, k_read(CORD[n + 1], ks))
            if 4 <= CORD[n + 1]:
                for f in range(8):
                    for u in range(2): pin(p0 + f, v_read(CORD[n + 1], f, u))
        st = []; aft = []
        if n == 0:
            st += rowmax("C", S[0], q0 + 9); aft = st[-1:]
            st += [Op(f"v_mov_b32 v{NEGM+i}, v{vM['C']}", "V", rel=q0 + 9, due=idx[("QK", "C", CORD[1])] - 2, deps=aft)
                   for i in range(16)]
        bm = n == 11 or (n == 0 and opt.bmc)
        st += softmax("C", n == 0, S[n & 1], P[n & 1], q0 + 9, p0 - 2, p0 + 2 if not bm else p0 - 1,
                      "add" if n == 0 else "raw", after=aft)
        streams.append(st)
    jl = CORD[11]
    paA = idx[("PV", "A", 11)]; paB = idx[("PV", "B", 11)]; pcl = idx[("PV", "C", jl)]
    wr = [idx[("PVm", "C", CORD[0], 0, b)] - 1 for b in range(4)]
    epiA, lastv = epilogue("A", paA + 3, [idx[("PVm", "A", 11, 1, b)] + 2 for b in range(4)], wr, [])
    epiB, lastv = epilogue("B", paB + 3, [idx[("PVm", "B", 11, 1, b)] + 2 for b in range(4)], [pcl - opt.bdue] * 4, lastv)
    epiC, lastv = epilogue("C", pcl, [idx[("PVm", "C", jl, 1, b)] + 2 for b in range(4)], [10**9] * 4, lastv)
    lowprio.append(epiA + epiB + epiC)

    allops = [o for st in streams + lowprio for o in st]
    for _ in range(2):
        for o in reversed(allops):
            for d in o.deps:
                early_ = 1 if (o.kind in ("L", "ST") and d.kind in ("V", "DW")) else 0
                d.due = min(d.due, o.due - early_)
    for k, st in enumerate(streams):
        for n, o in enumerate(st): o.prio = k * 1000 + n
    for k, st in enumerate(lowprio):
        for n, o in enumerate(st): o.prio = 10**6 + k * 10000 + n

    sched = [[] for _ in range(NG)]
    load = [0] * NG
    pending = sorted(allops, key=lambda o: o.prio)
    for g in range(NG):
        used = sum(o.cost for o in fixed[g]) + max(0, sum(o.kind == "S" for o in first[g]) - 1)
        heads, valu = [], []
        cand = [o for o in pending if o.rel <= g]
        ready = lambda o: all(d.done for d in o.deps) and all(d.gap + l <= g for d, l in o.lat)
        for o in cand:
            if o.kind in ("L", "ST") and ready(o) and all(d.gap < g or d in heads for d in o.deps) \
               and (used + o.cost <= cap[g] or o.due <= g):
                heads.append(o); o.done = True; o.gap = g; used += o.cost
        heads.sort(key=lambda o: o.kind != "L")
        while True:
            best = None
            for o in cand:
                if o.done or not ready(o): continue
                forced = o.due <= g
                if o.kind in ("L", "ST") and not forced: continue
                if not forced and used + o.cost > cap[g] + (opt.dwo if o.kind == "DW" else 0): continue
                hazard = bool(valu) and valu[-1].trans and valu[-1] in o.deps and not o.trans
                if hazard and not forced: continue
                key = (0 if forced else 1, hazard, o.prio)
                if best is None or key < best[0]: best = (key, o)
            if best is None: break
            key, o = best
            if key[1]: valu.append(Op("s_nop 0", "V")); used += 1
            valu.append(o); o.done = True; o.gap = g; used += o.cost + (1 if o.kind in ("L", "ST") else 0)
        pending = [o for o in pending if not o.done]
        sched[g] = list(fixed[g]) + heads + valu
        load[g] = used
    assert not pending, [o.text for o in pending[:5]]

    lg_seq = {}; vm_seq = {}; nlg = [0]; nvm = [0]; lg_gap = []
    lg_done = [0]; vm_done = [0]
    body = []
    owner = [None, 0]
    def known(n): return n in lg_seq or n in vm_seq
    def satisfied(n): return (n in lg_seq and lg_seq[n] <= lg_done[0]) or (n in vm_seq and vm_seq[n] <= vm_done[0])
    def wait_for(needs, g, extend):
        for n in needs: assert known(n), (n, g)
        lg = max([lg_seq[n] for n in needs if n in lg_seq] + [0])
        vm = max([vm_seq[n] for n in needs if n in vm_seq] + [0])
        parts = []
        if vm > vm_done[0]:
            assert nvm[0] - vm <= 63
            parts.append(f"vmcnt({nvm[0]-vm})"); vm_done[0] = vm
        if lg > lg_done[0]:
            if extend:
                while lg < nlg[0] and lg_gap[lg] <= g - 3: lg += 1
            lg = max(lg, nlg[0] - 15)
            parts.append(f"lgkmcnt({nlg[0]-lg})"); lg_done[0] = lg
        if parts: body.append("  s_waitcnt " + " ".join(parts))
        return bool(parts)
    def issue(o, g):
        if o.kind == "W": wait_for(o.needs, g, False); return
        late = [n for n in o.needs if not satisfied(n)]
        if late: wait_for(late, g, False)
        if o.kind == "S" and o.tag: owner[0] = o.tag; owner[1] = len(body)
        if o.kind == "G":
            want = o.tag[:2] if o.tag[0] != "DQ" else (o.tag[0], o.tag[1], o.tag[2] >> 2)
            assert owner[0] == want and len(body) - owner[1] >= 2, (o.text, owner)
        if o.kind in ("L", "DW"):
            nlg[0] += 1; lg_seq[o.tag] = nlg[0]; lg_gap.append(g)
        elif o.kind in ("G", "ST", "P"):
            nvm[0] += 1; vm_seq[o.tag] = nvm[0]
        body.append("  " + o.text)
    nstamp = [1]
    def stamp():
        if not opt.stamp: return
        k = nstamp[0]; nstamp[0] += 1
        if opt.enc and k not in opt.enc[:2]: return
        body.append(f"  {'s_memtime' if opt.stamp == 2 else 's_memrealtime'} s[{64+2*k}:{65+2*k}]")
        body.append("  s_waitcnt lgkmcnt(0)"); lg_done[0] = nlg[0]
    stamp_at = set()
    if opt.stamp:
        stamp_at = {b00} | {idx[("QK", "A", j)] for j in (1, 2, 3, 4, 6, 8, 10)} | {idx[("QK", "C", CORD[n])] for n in (0, 1, 4, 8)}
    for n, o in enumerate(pro):
        issue(o, -10)
        if opt.pf and o.tag == ("DQ", "A", 7) and opt.pf == 2 or opt.pf == 1 and n == len(pro) - 1:
            body.append(f"  s_getpc_b64 s[4:5]\nL_pc:\n  s_sub_u32 s4, s4, L_pc-{KNAME}\n  s_subb_u32 s5, s5, 0\n  s_and_b32 s5, s5, 0xffff")
            body.append(f"  s_mov_b32 s6, L_slow-{KNAME}\n  s_mov_b32 s7, 0x20000\n  v_lshlrev_b32 v26, 7, v0")
            issue(Op(f"buffer_load_dword v{vT1}, v26, s[4:7], s{sQoff['A'][0]} offen", "P", tag=("PF",)), -10)
    body.append("  ; ---- first tile ----")
    stamp()
    wait_for([("DQ", "A", 7)], -10, False)
    for ks in range(8): issue(q_read("A", ks), -10)
    wait_for([("DK", 0, 1)], -10, False)
    body.append("  s_barrier")
    stamp()
    for ks in range(8): issue(k_read(0, ks), ks // 2 - 1)
    extra = 0; since = 0
    for g in range(NG):
        if g < NM:
            late = [n for n in mf[g].needs if not satisfied(n)]
            if late: wait_for(late, g, True)
            if g in stamp_at: stamp()
            body.append("  " + mf[g].text)
            if g == NM - 1: mark = len(body)
        elif g == NM + 1:
            n = len(body) - mark
            if n < 12: body.append(f"  s_nop {11 - n}")
            stamp()
        needs = []
        for o in first[g]:
            if o.kind == "W": needs += o.needs
        for o in sched[g]: needs += [n for n in o.needs if known(n)]
        if g + 1 < NM and not post[g]:
            needs += [n for n in mf[g + 1].needs if known(n)]
        look = g + 2
        while look < NM and any(o.kind == "S" for o in first[look - 1]):
            needs += [n for n in mf[look].needs if n in lg_seq and lg_gap[lg_seq[n] - 1] <= g - 3]
            look += 1
        w = wait_for(needs, g, True)
        sc = [o for o in first[g] if o.kind == "S"]
        if w and sc: extra += 1
        for o in sc: issue(o, g)
        for o in sched[g]: issue(o, g)
        for o in post[g]: issue(o, g)
    stamp()
    if opt.stamp:
        body.append("  s_waitcnt vmcnt(0)")
        stamp()
        n = nstamp[0]
    if opt.stamp and opt.enc:
        a, b, K, wg = opt.enc
        body.append(f"  s_sub_u32 s50, s{64+2*b}, s{64+2*a}\n  s_mul_i32 s50, s50, {K}")
        if opt.stamp == 2: body.append("  s_lshr_b32 s50, s50, 6")
        if wg >= 0: body.append(f"  s_cmp_eq_u32 s2, {wg}\n  s_cselect_b32 s50, s50, 0")
        body.append("  s_memrealtime s[52:53]\n  s_waitcnt lgkmcnt(0)\nL_spin:\n  s_memrealtime s[54:55]\n  s_waitcnt lgkmcnt(0)")
        body.append("  s_sub_u32 s54, s54, s52\n  s_cmp_lt_u32 s54, s50\n  s_cbranch_scc1 L_spin")
    elif opt.stamp:
        body.append("  s_load_dwordx2 s[4:5], s[0:1], 40")
        body.append("  s_waitcnt lgkmcnt(0)")
        body.append("  s_and_b32 s5, s5, 0xffff\n  s_mov_b32 s6, 0x1000000\n  s_mov_b32 s7, 0x20000")
        body.append(f"  s_lshl_b32 s50, s2, 2\n  s_add_u32 s50, s50, s{sW}\n  s_lshl_b32 s50, s50, 7")
        body.append("  v_mov_b32 v21, 0")
        for k in range(n):
            body.append(f"  v_mov_b32 v20, s{64+2*k}")
            body.append(f"  buffer_store_dword v20, v21, s[4:7], s50 offen offset:{4*k}")
        body.append("  s_waitcnt vmcnt(0)")
    if opt.verbose:
        over = sum(max(0, load[g] - cap[g]) for g in range(NM))
        print(f"; overflow slots {over}, extra scalar {extra}, tail slots {sum(load[NM:])}, stamps {nstamp[0]}", file=sys.stderr)
        for g0 in range(0, NG, 32):
            print(g0, " ".join(str(load[g]) for g in range(g0, min(NG, g0 + 32))), file=sys.stderr)

    e(HEADER.rstrip("\n"))
    e(f""".amdgcn_target "amdgcn-amd-amdhsa--gfx950"
.text
.globl {KNAME}
.p2align 8
.type {KNAME},@function
{KNAME}:
  s_cmp_ge_u32 s2, 256
  s_cbranch_scc1 L_end
{"  s_memrealtime s[64:65]" if opt.stamp == 1 else "  s_memtime s[64:65]" if opt.stamp == 2 else ""}
  s_load_dwordx4 s[4:7], s[0:1], 0
  s_load_dwordx4 s[52:55], s[0:1], 16
  v_lshrrev_b32 v1, 6, v0
  v_and_b32 v0, 63, v0
  s_and_b32 s3, s2, 7
  v_readfirstlane_b32 s{sW}, v1
  s_lshr_b32 s50, s2, 4
  s_lshl_b32 s50, s50, 3
  s_add_u32 s3, s3, s50
  s_bfe_u32 s50, s2, 0x10003
  s_lshl_b32 s51, s3, 1
  s_add_u32 s51, s51, s50
  s_mul_i32 s3, s3, 98304
  s_mul_i32 s51, s51, 98304
  v_and_b32 v22, 3, v0
  v_bfe_u32 v23, v0, 2, 2
  v_lshrrev_b32 v24, 4, v0
  v_lshlrev_b32 v25, 8, v23
  v_lshl_add_u32 v25, v24, 6, v25
  v_lshl_add_u32 v{vQD[0]}, v22, 4, v25
  v_xor_b32 v{vQD[1]}, 16, v{vQD[0]}
  v_xor_b32 v{vQD[2]}, 32, v{vQD[0]}
  v_xor_b32 v{vQD[3]}, 48, v{vQD[0]}
  s_lshl_b32 s{sW2048}, s{sW}, 11
  s_lshl_b32 s{sQoff['A'][0]}, s{sW}, 13
  s_add_u32 s{sQoff['A'][1]}, s{sQoff['A'][0]}, 4096
  s_add_u32 s{sQL['A']}, s{sQoff['A'][0]}, {QSLOT['A']*8192}
  s_mov_b32 s{sQ+2}, 98304
  s_mov_b32 s{sQ+3}, 0x20000
  s_mov_b32 s{sK+2}, 98304
  s_mov_b32 s{sK+3}, 0x20000
  s_mov_b32 s{sV+2}, 98304
  s_mov_b32 s{sV+3}, 0x20000
  s_lshl_b32 s50, s{sW}, 5
  s_and_b32 s50, s50, 48
  v_add_u32 v{vDV}, s{sW2048}, v{vQD[0]}
  v_xor_b32 v{vDK0}, s50, v{vDV}
  v_xor_b32 v{vDK1}, 16, v{vDK0}
  s_add_u32 s{sQoff['B'][0]}, s{sQoff['A'][0]}, 32768
  s_add_u32 s{sQoff['B'][1]}, s{sQoff['A'][0]}, {32768+4096}
  s_add_u32 s{sQL['B']}, s{sQoff['A'][0]}, {QSLOT['B']*8192}""")
    for j in range(5): e(f"  s_mov_b32 s{sOff+j}, {8192*j}")
    e(f"""  s_waitcnt lgkmcnt(0)
  s_add_u32 s{sQ}, s4, s51
  s_addc_u32 s{sQ+1}, s5, 0
  s_and_b32 s{sQ+1}, s{sQ+1}, 0xffff
  s_add_u32 s{sK}, s6, s3
  s_addc_u32 s{sK+1}, s7, 0
  s_and_b32 s{sK+1}, s{sK+1}, 0xffff
  s_add_u32 s{sV}, s52, s3
  s_addc_u32 s{sV+1}, s53, 0
  s_and_b32 s{sV+1}, s{sV+1}, 0xffff""")
    addr = f"""  s_add_u32 s{sO}, s54, s51
  s_addc_u32 s{sO+1}, s55, 0
  s_and_b32 s{sO+1}, s{sO+1}, 0xffff
  s_mov_b32 s{sO+2}, 98304
  s_mov_b32 s{sO+3}, 0x20000
  s_add_u32 s{sQoff['C'][0]}, s{sQoff['A'][0]}, 65536
  s_add_u32 s{sQoff['C'][1]}, s{sQoff['A'][0]}, {65536+4096}
  s_mov_b32 s{sC}, {f2u(C_SCALE):#x}
  s_mov_b32 s{sMask}, 0xffff0000
  s_mov_b32 s{sT}, {f2u(2.0**30):#x}
""" + "".join(f"  s_mov_b32 s{sOff+j}, {8192*j}\n" for j in range(5, 12)) + f"""  v_and_b32 v20, 31, v0
  v_lshrrev_b32 v25, 5, v0
  v_lshrrev_b32 v26, 2, v20
  v_and_b32 v27, 3, v20
  v_lshlrev_b32 v24, 10, v26
  v_lshl_add_u32 v24, v27, 6, v24
  v_and_b32 v26, 3, v26
  v_xor_b32 v26, v26, v25
  v_lshl_add_u32 v{vKa[0]}, v26, 4, v24
  v_xor_b32 v{vKa[1]}, 32, v{vKa[0]}
  v_add_u32 v{vQA[0]}, s{sQL['A']}, v{vKa[0]}
  v_add_u32 v{vQA[1]}, s{sQL['A']}, v{vKa[1]}
  v_add_u32 v{vQB[0]}, s{sQL['B']}, v{vKa[0]}
  v_add_u32 v{vQB[1]}, s{sQL['B']}, v{vKa[1]}
  v_add_u32 v{vKb[0]}, 0x10000, v{vKa[0]}
  v_add_u32 v{vKb[1]}, 0x10000, v{vKa[1]}
  v_bfe_u32 v26, v0, 2, 2
  v_lshlrev_b32 v24, 10, v25
  v_lshl_add_u32 v24, v26, 6, v24
  v_bfe_u32 v26, v0, 4, 1
  v_lshl_add_u32 v24, v26, 5, v24
  v_and_b32 v26, 1, v0
  v_lshl_add_u32 v24, v26, 4, v24
  v_bfe_u32 v26, v0, 1, 1
  v_lshl_add_u32 v24, v26, 3, v24
  v_add_u32 v{vVa}, 49152, v24
  v_add_u32 v{vVb}, 98304, v24
  s_add_u32 s50, s{sW2048}, {STG}
  v_bfe_u32 v26, v0, 1, 2
  v_xor_b32 v26, v26, v25
  v_lshlrev_b32 v24, 6, v20
  v_lshl_add_u32 v24, v26, 4, v24
  v_add_u32 v{vSW[0]}, s50, v24
  v_xor_b32 v{vSW[1]}, 32, v{vSW[0]}
  v_lshrrev_b32 v26, 2, v0
  v_and_b32 v27, 3, v0
  v_lshlrev_b32 v24, 8, v26
  v_lshl_add_u32 v{vST}, v27, 4, v24
  v_bfe_u32 v24, v0, 3, 2
  v_xor_b32 v27, v27, v24
  v_lshlrev_b32 v24, 6, v26
  v_lshl_add_u32 v24, v27, 4, v24
  v_add_u32 v{vSR}, s50, v24"""
    k = body.index("  ; ---- first tile ----")
    e("\n".join(body[:k])); e(addr); e("\n".join(body[k:]))
    e(slow_path())
    e(f"""L_end:
  s_endpgm
.section .rodata,"a"
.p2align 6
.amdhsa_kernel {KNAME}
  .amdhsa_next_free_vgpr 512
  .amdhsa_next_free_sgpr 102
  .amdhsa_accum_offset 256
  .amdhsa_group_segment_fixed_size 0
  .amdhsa_kernarg_size 48
  .amdhsa_user_sgpr_count 2
  .amdhsa_user_sgpr_kernarg_segment_ptr 1
  .amdhsa_system_sgpr_workgroup_id_x 1
.end_amdhsa_kernel""")
    return "\n".join(out) + "\n"

def slow_path():
    o = []; e = o.append
    q, kf, ob, s, p, vt, vf = 32, 64, 96, 160, 192, 200, 232
    vm, vl, vg, vt0, vQ = 14, 11, 20, 18, 1
    sMk, sI, sTo, sJ, sJ2 = 52, 53, 54, 55, 61
    e("L_slow:\n  s_nop 4")
    e(f"  s_or_b64 s[50:51], {sr(sFlag['A'],2)}, {sr(sFlag['B'],2)}")
    e(f"  s_or_b64 s[50:51], s[50:51], {sr(sFlag['C'],2)}")
    e("  s_cbranch_scc0 L_end")
    e(f"  s_mov_b32 s{sMk}, 0")
    for i, t in enumerate("ABC"):
        e(f"  s_cmp_lg_u64 {sr(sFlag[t],2)}, 0")
        e(f"  s_cselect_b32 s{sI}, {1<<i}, 0")
        e(f"  s_or_b32 s{sMk}, s{sMk}, s{sI}")
    e(f"""  s_waitcnt vmcnt(0) lgkmcnt(0)
  v_and_b32 v21, 31, v0
  v_lshrrev_b32 v22, 5, v0
  v_lshlrev_b32 v{vQ}, 8, v21
  v_lshl_add_u32 v{vQ}, v22, 4, v{vQ}
  v_lshlrev_b32 v{vg}, 10, v22
  v_bfe_u32 v23, v21, 4, 1
  v_lshl_add_u32 v{vg}, v23, 5, v{vg}
  v_bfe_u32 v23, v21, 2, 1
  v_lshl_add_u32 v{vg}, v23, 4, v{vg}
  v_bfe_u32 v23, v21, 3, 1
  v_lshl_add_u32 v{vg}, v23, 3, v{vg}
  v_and_b32 v23, 3, v21
  v_lshl_add_u32 v{vg}, v23, 1, v{vg}
  s_mov_b32 s{sI}, 0
  s_mov_b32 s{sTo}, s{sQoff['A'][0]}
L_slow_tile:
  s_bitcmp1_b32 s{sMk}, s{sI}
  s_cbranch_scc0 L_slow_next
  s_waitcnt vmcnt(0)""")
    for ks in range(8): e(f"  buffer_load_dwordx4 {vr(q+4*ks,4)}, v{vQ}, {sr(sQ,4)}, s{sTo} offen offset:{32*ks}")
    def qk():
        for ks in range(8): e(f"  buffer_load_dwordx4 {vr(kf+4*ks,4)}, v{vQ}, {sr(sK,4)}, s{sJ} offen offset:{32*ks}")
        e("  s_waitcnt vmcnt(0)")
        for ks in range(8):
            e(f"  v_mfma_f32_32x32x16_bf16 {vr(s,16)}, {vr(kf+4*ks,4)}, {vr(q+4*ks,4)}, {vr(s,16) if ks else '0'}")
        e("  s_nop 15")
    e(f"  v_mov_b32 v{vm}, 0xff800000")
    e(f"  s_mov_b32 s{sJ}, 0")
    e("L_slow_max:")
    qk()
    for r in range(0, 16, 2): e(f"  v_max3_f32 v{vm}, v{vm}, v{s+r}, v{s+r+1}")
    e(f"""  s_add_u32 s{sJ}, s{sJ}, 8192
  s_cmp_lt_u32 s{sJ}, 98304
  s_cbranch_scc1 L_slow_max""")
    e(f"""  v_mov_b32 v{vt0}, v{vm}
  s_nop 1
  v_permlane32_swap_b32 v{vm}, v{vt0}
  v_max_f32 v{vm}, v{vm}, v{vt0}
  v_mov_b32 v{vl}, 0""")
    for r in range(64): e(f"  v_mov_b32 v{ob+r}, 0")
    e(f"  s_mov_b32 s{sJ}, 0")
    e("L_slow_pv:")
    qk()
    for r in range(16): e(f"  v_sub_f32 v{s+r}, v{s+r}, v{vm}")
    for r in range(16): e(f"  v_mul_f32 v{s+r}, s{sC}, v{s+r}")
    for r in range(16): e(f"  v_exp_f32 v{s+r}, v{s+r}")
    e("  s_nop 1")
    for r in range(16): e(f"  v_add_f32 v{vl}, v{vl}, v{s+r}")
    for i in range(8): e(f"  v_cvt_pk_bf16_f32 v{p+i}, v{s+2*i}, v{s+2*i+1}")
    for t in range(2):
        e(f"  s_add_u32 s{sJ2}, s{sJ}, {4096*t}")
        for b in range(4):
            for jj in range(8):
                e(f"  buffer_load_ushort v{vt+8*b+jj}, v{vg}, {sr(sV,4)}, s{sJ2} offen offset:{(8*(jj>>2)+(jj&3))*256+64*b}")
        e("  s_waitcnt vmcnt(0)")
        for b in range(4):
            for i in range(4):
                e(f"  v_lshl_or_b32 v{vf+4*b+i}, v{vt+8*b+2*i+1}, 16, v{vt+8*b+2*i}")
        e("  s_nop 1")
        for b in range(4):
            e(f"  v_mfma_f32_32x32x16_bf16 {vr(ob+16*b,16)}, {vr(vf+4*b,4)}, {vr(p+4*t,4)}, {vr(ob+16*b,16)}")
        e("  s_nop 7")
    e(f"""  s_add_u32 s{sJ}, s{sJ}, 8192
  s_cmp_lt_u32 s{sJ}, 98304
  s_cbranch_scc1 L_slow_pv
  s_nop 15""")
    e(f"""  v_mov_b32 v{vt0}, v{vl}
  s_nop 1
  v_permlane32_swap_b32 v{vl}, v{vt0}
  v_add_f32 v{vl}, v{vl}, v{vt0}
  v_rcp_f32 v{vl}, v{vl}
  s_nop 1""")
    for b in range(4):
        for ss in range(2):
            base = ob + 16 * b + 8 * ss; tmp = q + 8 * b + 4 * ss
            for i in range(8): e(f"  v_mul_f32 v{base+i}, v{vl}, v{base+i}")
            for i in range(4): e(f"  v_cvt_pk_bf16_f32 v{tmp+i}, v{base+2*i}, v{base+2*i+1}")
            e(f"  buffer_store_dwordx4 {vr(tmp,4)}, v{vQ}, {sr(sO,4)}, s{sTo} offen offset:{64*b+32*ss}")
    e(f"""L_slow_next:
  s_add_u32 s{sI}, s{sI}, 1
  s_add_u32 s{sTo}, s{sTo}, 32768
  s_cmp_lt_u32 s{sI}, 3
  s_cbranch_scc1 L_slow_tile""")
    return "\n".join(o)

if __name__ == "__main__":
    ints = lambda x: [int(y) for y in x.split(",")]
    ap = argparse.ArgumentParser()
    ap.add_argument("-o", default="k2.s")
    ap.add_argument("--la", type=int, default=3)
    ap.add_argument("--early", type=ints, default=[7, 2, 2])
    ap.add_argument("--qcp", type=ints, default=[1, 2])
    ap.add_argument("--qcs", type=int, default=2)
    ap.add_argument("--qcr", type=int, default=4)
    ap.add_argument("--bdue", type=int, default=12)
    ap.add_argument("--bma", type=int, default=0)
    ap.add_argument("--bmc", type=int, default=0)
    ap.add_argument("--dwc", type=int, default=5)
    ap.add_argument("--dwo", type=int, default=2)
    ap.add_argument("--stlat", type=int, default=3)
    ap.add_argument("--fq", default="nt")
    ap.add_argument("--fkv", default="nt")
    ap.add_argument("--fo", default="sc1")
    ap.add_argument("--pf", type=int, default=1)
    ap.add_argument("--verbose", type=int, default=0)
    ap.add_argument("--stamp", type=int, default=0)
    ap.add_argument("--enc", type=ints, default=None)
    opt = ap.parse_args()
    open(opt.o, "w").write(gen(opt))
```
